```python
import torch

def _softmax(x, axis=-1):
    return torch.softmax(x, dim=axis)
def _gelu(x):
    return torch.nn.functional.gelu(x, approximate="tanh")
def _silu(x):
    return torch.nn.functional.silu(x)
def _sigmoid(x):
    return torch.sigmoid(x)
def _layernorm(x, axis=-1, eps=1e-5):
    m = x.mean(dim=axis, keepdim=True)
    v = x.var(dim=axis, keepdim=True, unbiased=False)
    return (x - m) / torch.sqrt(v + eps)
def _scatter_add(tgt, idx, src, axis=0):
    return tgt.clone().index_add_(axis, idx, src)
def _segment_sum(src, seg, n):
    out = torch.zeros((n,) + src.shape[1:], dtype=src.dtype)
    return out.index_add_(0, seg, src)
def _pad(x, pw):
    flat = tuple(v for pair in reversed(pw) for v in pair)
    return torch.nn.functional.pad(x, flat)

kernel_name = 'standalone__ssm_conv_s4d__prompt'

def setup_inputs():

    _w = (lambda a: (lambda t: t.to(torch.bfloat16) if t.is_floating_point() else t)(torch.as_tensor(a)))
    Bsz, L, D, N = 1, 2048, 448, 256
    return {
        "u": _w((lambda *s: torch.randn(*s, dtype=torch.bfloat16) * 0.05)(Bsz, L, D)),
        "log_A_real": _w((lambda *s: torch.randn(*s, dtype=torch.bfloat16) * 6.4)(D, N) * 0.5),
        "A_imag": _w((lambda *s: torch.randn(*s, dtype=torch.bfloat16) * 0.05)(D, N) * 3.14),
        "C_real": _w((lambda *s: torch.randn(*s, dtype=torch.bfloat16) * 0.05)(D, N) / N ** 0.5),
        "C_imag": _w((lambda *s: torch.randn(*s, dtype=torch.bfloat16) * 0.05)(D, N) / N ** 0.5),
        "log_dt": _w((lambda *s: torch.randn(*s, dtype=torch.bfloat16) * 0.05)(D) * 0.5 - 4.0),
        "D_skip": _w((lambda *s: torch.randn(*s, dtype=torch.bfloat16) * 0.05)(D)),
    }

def reference(u, log_A_real, A_imag, C_real, C_imag, log_dt, D_skip):
    L = u.shape[1]
    dt = torch.exp(log_dt)
    A = -torch.exp(log_A_real) + 1j * A_imag
    C = (C_real + 1j * C_imag) * dt[:, None]
    pos = (lambda x, dt: x.to(dt))(torch.arange(L), log_dt.dtype)
    P = torch.exp((A * dt[:, None])[:, :, None] * pos[None, None, :])
    K = 2.0 * torch.einsum("dn,dnl->dl", C, P).real
    L2 = 2 * L
    u_t = (lambda x, *d: x.permute(*d))(u, 0, 2, 1)
    Kf = (lambda x, *a, **k: torch.fft.rfft(x.float(), *a, **k))(K, L2)
    Uf = (lambda x, *a, **k: torch.fft.rfft(x.float(), *a, **k))(u_t, L2)
    y = (lambda x, *a, **k: torch.fft.irfft(x, *a, **k).to(torch.bfloat16))(Uf * Kf[None, :, :], L2)[:, :, :L]
    y = (lambda x, *d: x.permute(*d))(y, 0, 2, 1)
    return y + u * D_skip[None, None, :]
```

```python
import re, copy

TRANS = ('v_exp_f32', 'v_log_f32', 'v_rcp_f32', 'v_rsq_f32', 'v_sqrt_f32', 'v_sin_f32', 'v_cos_f32')

def regs_of(tok):
    tok = tok.strip()
    tok = tok.lstrip('-')
    tok = tok.strip('|')
    m = re.fullmatch(r'([vs])(\d+)', tok)
    if m: return [(m.group(1), int(m.group(2)))]
    m = re.fullmatch(r'([vs])\[(\d+):(\d+)\]', tok)
    if m: return [(m.group(1), i) for i in range(int(m.group(2)), int(m.group(3)) + 1)]
    if tok == 'vcc': return [('x', 'vcc')]
    if tok == 'exec': return [('x', 'exec')]
    if tok == 'm0': return [('x', 'm0')]
    return []

class Ins:
    __slots__ = ('text', 'op', 'rd', 'wr', 'kind', 'dpp', 'srcc', 'ws')
    def __init__(self, text):
        self.text = text
        body = text.split(';')[0].strip()
        parts = body.split(None, 1)
        self.op = op = parts[0]
        rest = parts[1] if len(parts) > 1 else ''
        ops = []; depth = 0; cur = ''
        for ch in rest:
            if ch == '[': depth += 1
            if ch == ']': depth -= 1
            if ch == ',' and depth == 0: ops.append(cur); cur = ''
            else: cur += ch
        ops.append(cur)
        ops = [o.strip() for o in ops if o.strip()]
        if ops:
            last = ops[-1].split()
            ops[-1] = last[0]
        self.dpp = '_dpp' in op
        self.srcc = []
        self.ws = 1
        R = lambda lst: [r for t in lst for r in regs_of(t)]
        if op.startswith('v_mfma'):
            self.kind = 'mfma'; self.wr = R(ops[:1]); self.rd = R(ops[1:]); self.srcc = R(ops[3:4])
        elif op.startswith('v_cmp'):
            self.kind = 'valu'; self.wr = R(ops[:1]); self.rd = R(ops[1:])
        elif op in ('v_readfirstlane_b32', 'v_readlane_b32'):
            self.kind = 'valu'; self.wr = R(ops[:1]); self.rd = R(ops[1:])
        elif op.startswith('v_'):
            self.kind = 'trans' if op.replace('_e32', '').replace('_e64', '') in TRANS else 'valu'
            self.wr = R(ops[:1]); self.rd = R(ops[1:])
            if self.dpp or op.startswith('v_fmac') or op.startswith('v_writelane') or 'mixhi' in op or 'mixlo' in op: self.rd += self.wr
            if op.startswith('v_cndmask') and len(ops) == 3: self.rd.append(('x', 'vcc'))
            if op.startswith('v_permlane'): self.wr = R(ops[:2]); self.rd = R(ops[:2])
        elif op.startswith('ds_read'):
            self.kind = 'dsr'; self.wr = R(ops[:1]); self.rd = R(ops[1:])
            if 'addtid' in op: self.rd.append(('x', 'm0'))
            if 'd16' in op: self.rd += self.wr
        elif op.startswith('ds_write'):
            self.kind = 'dsw'; self.wr = []; self.rd = R(ops)
            if 'addtid' in op: self.rd.append(('x', 'm0'))
        elif op.startswith('buffer_load') or op.startswith('global_load'):
            self.kind = 'vld'; self.wr = R(ops[:1]); self.rd = R(ops[1:])
        elif op.startswith('buffer_store') or op.startswith('global_store'):
            self.kind = 'vst'; self.wr = []; self.rd = R(ops)
        elif op.startswith('s_load') or op.startswith('s_memtime') or op.startswith('s_memrealtime'):
            self.kind = 'smem'; self.wr = R(ops[:1]); self.rd = R(ops[1:])
        elif op == 's_nop':
            self.kind = 'nop'; self.wr = []; self.rd = []; self.ws = int(ops[0]) + 1
        elif op in ('s_waitcnt', 's_barrier', 's_endpgm', 's_setprio', 's_branch', 's_sleep') or op.startswith('s_cbranch') or op.endswith(':'):
            self.kind = 'ctl'; self.wr = []; self.rd = []
            if op.endswith(':'): self.ws = 0
        elif op.startswith('s_cmp') or op.startswith('s_bitcmp'):
            self.kind = 'salu'; self.wr = []; self.rd = R(ops)
        elif op.startswith('s_'):
            self.kind = 'salu'; self.wr = R(ops[:1]); self.rd = R(ops[1:])
        else:
            raise ValueError('unknown op ' + text)

class Builder:
    def __init__(self):
        self.lines = []
        self.hist = []
        self.lds = []
        self.vm = []
        self.smem = []
        self.nops = 0
        self.count = {}
    def fork(self):
        b = Builder()
        b.hist = list(self.hist); b.lds = list(self.lds); b.vm = list(self.vm); b.smem = list(self.smem)
        return b
    def raw(self, text):
        self.lines.append(text)
    def _emit(self, ins):
        self.lines.append('    ' + ins.text if not ins.op.endswith(':') else ins.text)
        self.hist.append(ins)
        if len(self.hist) > 40: self.hist = self.hist[-40:]
        self.count[ins.kind] = self.count.get(ins.kind, 0) + 1
    def wait(self, vm=None, lgkm=None):
        parts = []
        if vm is not None:
            vm = min(vm, 63); parts.append('vmcnt(%d)' % vm)
            if len(self.vm) > vm: self.vm = self.vm[len(self.vm) - vm:] if vm else []
        if lgkm is not None:
            lgkm = min(lgkm, 15); parts.append('lgkmcnt(%d)' % lgkm)
            if lgkm == 0: self.smem = []
            else: assert not self.smem, 'counted lgkm wait with smem outstanding'
            if len(self.lds) > lgkm: self.lds = self.lds[len(self.lds) - lgkm:] if lgkm else []
        self._emit(Ins('s_waitcnt ' + ' '.join(parts)))
    def _need(self, q, touched):
        idx = -1
        for i, d in enumerate(q):
            if d & touched: idx = i
        return None if idx < 0 else len(q) - 1 - idx
    def __call__(self, text):
        for t in text.strip().split('\n'):
            t = t.strip()
            if t: self.one(t)
    def one(self, text):
        ins = Ins(text)
        touched = set(ins.rd) | set(ins.wr)
        vmn = self._need(self.vm, touched)
        ln = self._need(self.lds, touched)
        if any(r in touched for r in self.smem): ln = 0
        if ln is not None and ln > 0 and self.smem: ln = 0
        if vmn is not None or ln is not None: self.wait(vmn, ln)
        need = 0; dist = 0
        rd = set(ins.rd); wr = set(ins.wr)
        isv = ins.kind in ('valu', 'trans')
        for p in reversed(self.hist):
            pw = set(p.wr)
            req = 0
            pv = p.kind in ('valu', 'trans')
            if pv:
                vw = {r for r in pw if r[0] == 'v'}; sw = {r for r in pw if r[0] != 'v'}
                if p.kind == 'trans' and (isv or ins.kind == 'mfma') and ins.kind != 'trans' and vw & rd: req = max(req, 1)
                if p.kind == 'trans' and ins.kind in ('dsw', 'vst') and vw & rd: req = max(req, 1)
                if ins.dpp and vw & rd: req = max(req, 2)
                if ins.kind == 'mfma' and vw & rd: req = max(req, 2)
                if ins.op in ('v_readfirstlane_b32', 'v_readlane_b32') and vw & rd: req = max(req, 1)
                if ins.op.startswith('v_permlane') and vw & rd: req = max(req, 2)
                if ins.kind in ('vld', 'vst') and sw & rd: req = max(req, 5)
                if isv and sw & rd: req = max(req, 2)
                if ins.kind in ('salu', 'smem') and sw & rd: req = max(req, 2)
                if ('x', 'exec') in pw and (ins.dpp or ins.kind == 'mfma'): req = max(req, 5)
            if p.kind == 'salu':
                if ('x', 'm0') in pw and ('x', 'm0') in rd and ins.kind in ('dsr', 'dsw', 'vld'): req = max(req, 1)
                if ('x', 'exec') in pw and ins.dpp: req = max(req, 2)
            if p.kind == 'mfma':
                npass = 8 if '32x32x16' in p.op else 4
                big = {8: 12, 4: 8}[npass]
                if ins.kind == 'mfma':
                    if pw & (rd - set(ins.srcc)): req = max(req, big)
                    if pw & set(ins.srcc) and not (p.wr == ins.srcc and p.op == ins.op): req = max(req, big - 2)
                    if pw & wr and not (p.wr == ins.wr and p.op == ins.op): req = max(req, big)
                elif isv or ins.kind in ('dsw', 'vst', 'dsr', 'vld'):
                    if pw & (rd | wr): req = max(req, big)
                if isv and set(p.srcc) & wr: req = max(req, {8: 7, 4: 3}[npass])
            if p.kind == 'vst' and ('x3' in p.op or 'x4' in p.op) and set(p.rd) & wr: req = max(req, 2)
            if p.kind == 'dsw' and ('b128' in p.op or 'b96' in p.op) and set(p.rd) & wr and isv: req = max(req, 2)
            need = max(need, req - dist)
            dist += p.ws
            if dist > 24: break
        while need > 0:
            n = min(need, 16)
            self._emit(Ins('s_nop %d' % (n - 1))); self.nops += n; need -= n
        self._emit(ins)
        if ins.kind == 'dsr': self.lds.append(set(ins.wr))
        elif ins.kind == 'dsw': self.lds.append(set())
        elif ins.kind == 'vld': self.vm.append(set(ins.wr))
        elif ins.kind == 'vst': self.vm.append(set())
        elif ins.kind == 'smem': self.smem += list(ins.wr)
        assert len(self.vm) <= 63
    def barrier(self):
        if self.lds or self.smem: self.wait(lgkm=0)
        self.one('s_barrier')
    def text(self):
        return '\n'.join(self.lines) + '\n'

def interleave(main, fillers, every=1, start=0):
    out = []; fi = 0
    for i, m in enumerate(main):
        out.append(m)
        if i >= start and (i - start) % every == every - 1 and fi < len(fillers):
            out.append(fillers[fi]); fi += 1
    out += fillers[fi:]
    return out
```

```python
import re
from asmb import Ins

def mem_tags(text):
    w = re.findall(r'@w:(\w+)', text); r = re.findall(r'@r:(\w+)', text)
    return set(r), set(w)

def schedule(lines, lat_valu=2, lat_trans=3, lat_dsr=24, lat_mfma=18, mfma_gap=6, lat_vld=0):
    n = len(lines)
    ins = [Ins(t) for t in lines]
    tags = [mem_tags(t) for t in lines]
    preds = [dict() for _ in range(n)]
    lastw = {}; readers = {}
    mw = {}; mr = {}
    def lat(p):
        k = ins[p].kind
        return {'valu': lat_valu, 'trans': lat_trans, 'dsr': lat_dsr, 'mfma': lat_mfma, 'salu': 2, 'vld': lat_vld}.get(k, 1)
    for i, x in enumerate(ins):
        def dep(p, l):
            if p != i: preds[i][p] = max(preds[i].get(p, 0), l)
        for r in x.rd:
            if r in lastw:
                p = lastw[r]
                l = lat(p)
                if ins[p].kind == 'mfma' and x.kind == 'mfma' and r in x.srcc: l = 1
                if x.dpp or x.kind == 'mfma': l = max(l, 3) if ins[p].kind != 'mfma' else l
                dep(p, l)
        for r in x.wr:
            if r in lastw: dep(lastw[r], 1)
            for p in readers.get(r, []): dep(p, 1)
        for r in x.rd: readers.setdefault(r, []).append(i)
        for r in x.wr: lastw[r] = i; readers[r] = []
        tr, tw = tags[i]
        for t in tr:
            for p in mw.get(t, []): dep(p, 1)
        for t in tw:
            for p in mr.get(t, []): dep(p, 1)
        for t in tr: mr.setdefault(t, []).append(i)
        for t in tw: mw.setdefault(t, []).append(i)
    succ = [[] for _ in range(n)]
    for i in range(n):
        for p, l in preds[i].items(): succ[p].append((i, l))
    prio = [0] * n
    for i in reversed(range(n)):
        prio[i] = max([l + prio[s] for s, l in succ[i]], default=0)
    done = [None] * n
    order = []; t = 0; last_mfma = -100
    remaining = set(range(n))
    while remaining:
        cands = []
        for i in remaining:
            if all(done[p] is not None for p in preds[i]):
                est = max([done[p] + l for p, l in preds[i].items()], default=0)
                if ins[i].kind == 'mfma': est = max(est, last_mfma + mfma_gap)
                cands.append((est, i))
        ready = [i for est, i in cands if est <= t]
        if ready:
            i = max(ready, key=lambda k: (prio[k], -k))
        else:
            est, i = min(cands, key=lambda c: (c[0], -prio[c[1]]))
            t = est
        done[i] = t
        if ins[i].kind == 'mfma': last_mfma = t
        t += 2 if ins[i].kind == 'trans' else 1
        order.append(i); remaining.discard(i)
    return [lines[i] for i in order]
```

```python
import sys, struct
from asmb import Builder
from sched import schedule

STAMPS = '--stamps' in sys.argv
OUT = [a for a in sys.argv[1:] if not a.startswith('--')][0]
NAME = 'standalone__ssm_conv_s4d__prompt_kernel'

def f32(x): return '0x%08x' % struct.unpack('<I', struct.pack('<f', x))[0]
import numpy as np
LOG2E = 1.4426950408889634
INV2PI = 0.15915494309189535
I_HI = float(np.float32(INV2PI)); I_LO = INV2PI - I_HI

RS = 2064; BROW0 = 21
UBASE = 53 * RS; USTR = 4160
KBASE = UBASE + 4 * USTR; KSTR = 4672; KPAD = 288
LDS_TOTAL = KBASE + 4 * KSTR
M0U = 60000
SLOT = {**{c: c for c in range(8)}, 256: 8, 258: 9, 260: 10, 262: 13, 2048: 15, 512: 16, 516: 17, 1024: 18, 1536: 19, 768: 20, 772: 11, 1280: 12, 1792: 14}
ROW2SLOT = list(range(11)) + [16, 10, 13, 8, 15, 16, 17, 18, 19, 20, 11, 12, 14] + [15] * 8
C0 = lambda k: 1796 - 248 * (7 - k)
NBLK = lambda k: -(-(C0(k) // 4 + 63) // 16)
GOFF = [0, 64, 124, 188]

P = lambda r: 'v[%d:%d]' % (r, r + 1)
Q = lambda r: 'v[%d:%d]' % (r, r + 3)
X16 = lambda r: 'v[%d:%d]' % (r, r + 15)
vLANE = 1; vRAW = 2; vU = 6
vNEGDTL = 14; vJHI = 15; vJLO = 16; vMULT = 18
vKA = 20; vKB = 21; vCA = 22; vCB = 23; vYR = 24; vUS = 25; vOUT = 27; vDSK = 28; vUSK = 30; vKW0 = 32; vKW1 = 33
z, z2, z4, w1, w2, w3, w4, w8, w12, w16, ZZ, G0, G1 = [34 + 2 * i for i in range(13)]
T0, T1 = 60, 62
hz, hz2, hz4 = 64, 65, 66
hB = {j: 66 + j for j in range(1, 17)}
TMPH = list(range(83, 91))
hA = {c: 91 + s for c, s in SLOT.items()}
FB = 112; FA = 144; ACC = 176

def cmul32(d, a, b, conj=False):
    return ['v_pk_mul_f32 %s, %s, %s op_sel:[0,0] op_sel_hi:[1,0]' % (P(d), P(a), P(b)),
            'v_pk_fma_f32 %s, %s, %s, %s op_sel:[1,1,0] op_sel_hi:[0,1,1] %s' % (P(d), P(a), P(b), P(d), 'neg_hi:[1,0,0]' if conj else 'neg_lo:[1,0,0]')]
def cmul16(d, a, b, conj=False):
    return ['v_pk_mul_f16 v%d, v%d, v%d op_sel:[0,0] op_sel_hi:[1,0]' % (d, a, b),
            'v_pk_fma_f16 v%d, v%d, v%d, v%d op_sel:[1,1,0] op_sel_hi:[0,1,1] %s' % (d, a, b, d, 'neg_hi:[1,0,0]' if conj else 'neg_lo:[1,0,0]')]
def cvt16(d, a): return ['v_cvt_pk_f16_f32 v%d, v%d, v%d' % (d, a, a + 1)]
def wrB(j, r): return ['ds_write_addtid_b32 v%d offset:%d ; @w:sB' % (r, j * RS)]
def wrA(c): return ['ds_write_addtid_b32 v%d offset:%d ; @w:sA' % (hA[c], SLOT[c] * RS)]

nstamp = [0]
def stamp(b):
    if not STAMPS: return
    i = nstamp[0]; nstamp[0] += 1
    b.raw('    s_memtime s[%d:%d]' % (60 + 2 * i, 61 + 2 * i))
    b.raw('    s_waitcnt lgkmcnt(0)')
    b.lds = []; b.smem = []

def gen_round(rnd):
    L = []
    un = (lambda d, s: 'v_lshlrev_b32 v%d, 16, v%d' % (d, s)) if rnd == 0 else (lambda d, s: 'v_and_b32 v%d, 0xffff0000, v%d' % (d, s))
    L += [un(T0, vRAW), un(T0 + 1, vRAW + 1), un(G0, vRAW + 2), un(G0 + 1, vRAW + 3)]
    L += ['v_mul_f32 v%d, %s, v%d' % (T0, f32(LOG2E), T0),
          'v_exp_f32 v%d, v%d' % (T0, T0),
          'v_cvt_pk_bf16_f32 v%d, 0, v%d' % (T0, T0),
          'v_mul_f32 v%d, v%d, v%d' % (T0, T0, vNEGDTL),
          'v_exp_f32 v%d, v%d' % (T0, T0),
          'v_mul_f32 v%d, v%d, v%d' % (T1, T0 + 1, vJHI),
          'v_rndne_f32 v%d, v%d' % (T1, T1),
          'v_fma_f32 v%d, v%d, v%d, -v%d' % (T1, T0 + 1, vJHI, T1),
          'v_fma_f32 v%d, v%d, v%d, v%d' % (T1, T0 + 1, vJLO, T1),
          'v_cos_f32 v%d, v%d' % (z, T1),
          'v_sin_f32 v%d, v%d' % (z + 1, T1),
          'v_pk_mul_f32 %s, %s, %s op_sel:[0,0] op_sel_hi:[1,0]' % (P(z), P(z), P(T0))]
    L += cmul32(z2, z, z) + cmul32(z4, z2, z2) + cmul32(w1, z4, z4) + cmul32(w2, w1, w1) + cmul32(w4, w2, w2)
    L += cmul32(w8, w4, w4) + cmul32(w16, w8, w8) + cmul32(ZZ, w16, w16) + cmul32(w3, w2, w1) + cmul32(w12, w8, w4)
    L += cvt16(hz, z) + cvt16(hz2, z2) + cvt16(hz4, z4)
    L += ['s_mov_b32 m0, s41']
    for j, r in ((1, w1), (2, w2), (3, w3), (4, w4), (8, w8), (12, w12), (16, w16)):
        L += cvt16(hB[j], r) + wrB(j, hB[j])
    for b_ in (4, 8, 12):
        for a_ in (1, 2, 3):
            L += cmul16(hB[a_ + b_], hB[a_], hB[b_]) + wrB(a_ + b_, hB[a_ + b_])
    for j in range(1, 16):
        t = TMPH[j % len(TMPH)]
        L += cmul16(t, hB[j], hB[16]) + wrB(16 + j, t)
    for s in range(8):
        L += ['ds_read_b128 %s, v%d offset:%d ; @r:sB' % (Q(FB + 4 * s), vKB, 32 * s)]
    L += ['v_pk_mul_f32 %s, %s, s[44:45] op_sel:[0,0] op_sel_hi:[1,0] neg_hi:[0,1]' % (P(G0), P(G0))]
    L += cvt16(hA[0], G0)
    g = [G0, G1]
    for m in range(1, 9):
        L += cmul32(g[m & 1], g[(m - 1) & 1], ZZ, conj=True) + cvt16(hA[256 * m], g[m & 1])
    for d, a_, b_ in ((1, 0, hz), (2, 0, hz2), (4, 0, hz4), (3, 1, hz2), (5, 1, hz4), (6, 2, hz4), (7, 3, hz4),
                      (258, 256, hz2), (260, 256, hz4), (262, 258, hz4), (516, 512, hz4), (772, 768, hz4)):
        L += cmul16(hA[d], hA[a_], b_, conj=True)
    L += ['s_mov_b32 m0, s40']
    for c in sorted(SLOT): L += wrA(c)
    for s in range(8):
        L += ['ds_read_b128 %s, v%d offset:%d ; @r:sA' % (Q(FA + 4 * s), vKA, 32 * s)]
    return L

def kgen_mfmas(rnd):
    return ['v_mfma_f32_32x32x16_f16 %s, %s, %s, %s' % (X16(ACC), Q(FA + 4 * s), Q(FB + 4 * s), '0' if (rnd == 0 and s == 0) else X16(ACC)) for s in range(8)]

def stage_u(half):
    a, b_ = vU + 4 * half, vU + 4 * half + 2
    L = ['s_mov_b32 m0, s42']
    for c in range(4):
        t = T0 + c
        sel = 's46' if c % 2 == 0 else 's47'
        L += ['v_perm_b32 v%d, v%d, v%d, %s' % (t, b_ + c // 2, a + c // 2, sel),
              'ds_write_addtid_b32 v%d offset:%d' % (t, UBASE + 64 - M0U + c * USTR + 2048 * half)]
    return L

b = Builder()
b.raw(NAME + ':')
b('s_load_dwordx16 s[4:19], s[0:1], 0')
if STAMPS:
    b('s_load_dwordx2 s[58:59], s[0:1], 72')
b('s_cmp_ge_u32 s2, 224')
b('s_cbranch_scc1 L_end')
if STAMPS:
    b.raw('    s_memtime s[56:57]')
b('''
v_lshrrev_b32 v2, 6, v0
v_and_b32 v%d, 63, v0
v_readfirstlane_b32 s28, v2
s_and_b32 s33, s2, 7
s_lshr_b32 s34, s2, 3
s_and_b32 s31, s34, 1
s_lshr_b32 s34, s34, 1
s_mul_i32 s32, s33, 14
s_add_u32 s32, s32, s34
s_and_b32 s29, s28, 3
s_lshr_b32 s30, s28, 2
s_lshl_b32 s40, s28, 8
s_add_u32 s41, s40, %d
s_add_u32 s42, s40, %d
s_xor_b32 s43, s40, 0x400
s_mov_b32 s46, 0x05040100
s_mov_b32 s47, 0x07060302
''' % (vLANE, BROW0 * RS, M0U))
b('''
s_lshl_b32 s33, s32, 2
s_add_u32 s33, s33, s29
s_lshl_b32 s33, s33, 9
s_lshl_b32 s34, s30, 8
s_add_u32 s33, s33, s34
v_lshlrev_b32 v60, 2, v%d
v_add_u32 v60, s33, v60
s_mul_i32 s33, s28, %d
s_lshl_b32 s35, s32, 3
s_add_u32 s33, s33, s35
s_movk_i32 s34, 1792
v_mul_u32_u24 v61, s34, v%d
v_add_u32 v61, s33, v61
s_mov_b32 s23, 0x00020000
s_mov_b32 s27, 0x00020000
s_mov_b32 s26, %d
s_cmp_eq_u32 s31, 0
s_cselect_b32 s22, %d, s26
s_cselect_b32 s22, s26, %d
s_mov_b32 s48, %d
''' % (vLANE, 128 * 896, vLANE, 2048 * 896, 0, (C0(5) + 252) * 896, 1024 * 896))
lut = 0
for i in range(9, 25): lut |= (ROW2SLOT[i] - 8) << (4 * (i - 9))
b('''
v_and_b32 v34, 31, v{lane}
v_lshrrev_b32 v35, 5, v{lane}
v_min_u32 v36, 24, v34
v_subrev_u32 v37, 9, v36
v_lshlrev_b32 v37, 2, v37
s_mov_b32 s50, {lo}
s_mov_b32 s51, {hi}
v_lshrrev_b64 v[38:39], v37, s[50:51]
v_and_b32 v38, 15, v38
v_add_u32 v38, 8, v38
v_cmp_gt_u32 vcc, 9, v34
v_cndmask_b32 v38, v38, v34, vcc
s_movk_i32 s34, {rs}
v_lshlrev_b32 v40, 4, v35
v_add_u32 v40, s40, v40
v_mad_u32_u24 v{ka}, v38, s34, v40
v_mad_u32_u24 v{kb}, v34, s34, v40
v_add_u32 v{kb}, {b0}, v{kb}
'''.format(lane=vLANE, lo=hex(lut & 0xffffffff), hi=hex(lut >> 32), rs=RS, ka=vKA, kb=vKB, b0=BROW0 * RS))
b('''
v_bfe_u32 v41, v{lane}, 4, 1
v_bfe_u32 v42, v{lane}, 2, 2
v_and_b32 v43, 3, v{lane}
s_mul_i32 s33, s29, {kstr}
s_add_u32 s33, s33, {kbase}
s_movk_i32 s34, 248
v_mul_u32_u24 v44, s34, v41
v_add_u32 v45, v43, v35
v_lshl_add_u32 v44, v45, 6, v44
v_lshl_add_u32 v44, v42, 4, v44
v_add_u32 v{ca}, s33, v44
v_lshlrev_b32 v44, 4, v34
v_lshl_add_u32 v44, v35, 3, v44
v_add_u32 v{kw0}, s33, v44
v_lshlrev_b32 v44, 4, v{lane}
v_add_u32 v{kw1}, s33, v44
s_mul_i32 s34, s29, {ustr}
s_add_u32 s34, s34, {ub120}
v_lshlrev_b32 v44, 5, v41
v_lshl_add_u32 v44, v43, 3, v44
v_add_u32 v44, s34, v44
v_lshlrev_b32 v45, 6, v35
v_lshl_add_u32 v45, v42, 4, v45
v_sub_u32 v{cb}, v44, v45
'''.format(lane=vLANE, kstr=KSTR, kbase=KBASE, ca=vCA, cb=vCB, kw0=vKW0, kw1=vKW1, ustr=USTR, ub120=UBASE + 120))
b('''
s_lshr_b32 s34, s28, 1
s_and_b32 s35, s28, 1
s_lshl_b32 s35, s35, 5
v_add_u32 v44, s35, v34
s_lshl_b32 s36, s34, 11
v_lshlrev_b32 v45, 9, v35
v_lshl_add_u32 v45, v44, 2, v45
v_add_u32 v{yr}, s36, v45
s_lshl_b32 s36, s34, 6
s_lshr_b32 s37, s34, 1
s_lshl_b32 s37, s37, 2
s_sub_u32 s36, s36, s37
v_add_u32 v45, s36, v44
s_movk_i32 s37, {ustr2}
v_mul_u32_u24 v46, s37, v35
v_lshl_add_u32 v46, v45, 1, v46
v_add_u32 v{us}, {usb}, v46
s_movk_i32 s37, 896
v_mul_u32_u24 v46, s37, v45
v_lshl_add_u32 v46, v35, 2, v46
s_lshl_b32 s37, s32, 3
v_add_u32 v46, s37, v46
s_and_b32 s37, s34, 1
s_lshl_b32 s37, s37, 6
v_add_u32 v47, s37, v44
v_add_u32 v48, 0x40000000, v46
v_cmp_gt_u32 vcc, 4, v47
v_cndmask_b32 v{out}, v46, v48, vcc
v_mov_b32 v{usk}, 0
v_mov_b32 v{usk1}, 0
'''.format(yr=vYR, ustr2=2 * USTR, us=vUS, usb=UBASE + 64 - 376, out=vOUT, usk=vUSK, usk1=vUSK + 1))
b('''
v_mov_b32 v44, 0x3c00
v_mov_b32 v48, 0
v_mov_b32 v49, 0
v_mov_b32 v50, 0
v_mov_b32 v51, 0
s_mov_b32 m0, s41
ds_write_addtid_b32 v44 offset:0
v_cmp_gt_u32 vcc, 36, v{lane}
s_and_saveexec_b64 s[50:51], vcc
ds_write_b128 v{kw1}, v[48:51]
s_mov_b64 exec, s[50:51]
s_mul_i32 s34, s29, {ustr}
s_add_u32 s34, s34, {ubase}
v_and_b32 v45, 15, v{lane}
v_lshl_add_u32 v45, v45, 2, s34
ds_write_b32 v45, v48
'''.format(lane=vLANE, kw1=vKW1, ustr=USTR, ubase=UBASE))
b.wait(lgkm=0)
b('''
global_load_dword v2, v60, s[6:7]
global_load_dword v3, v60, s[8:9]
s_lshl_b32 s33, s32, 3
s_load_dwordx2 s[36:37], s[14:15], s33
s_load_dwordx2 s[38:39], s[16:17], s33
global_load_dword v4, v60, s[10:11]
global_load_dword v5, v60, s[12:13]
s_mov_b32 s20, s4
s_mov_b32 s21, s5
s_mov_b32 s24, s18
s_mov_b32 s25, s19
s_barrier
buffer_load_dwordx2 v[6:7], v61, s[20:23], 0 offen
buffer_load_dwordx2 v[8:9], v61, s[20:23], 0 offen offset:896
v_mov_b32 v26, v61
''')
b.wait(lgkm=0)
stamp(b)
b('''
s_lshl_b32 s33, s29, 4
s_lshr_b64 s[36:37], s[36:37], s33
s_lshl_b32 s36, s36, 16
v_mov_b32 v17, {log2e}
v_mul_f32 v18, s36, v17
v_exp_f32 v18, v18
v_cmp_gt_u32 vcc, 32, v{lane}
v_mov_b32 v44, s39
v_mov_b32 v45, s38
v_cvt_pk_bf16_f32 v18, 0, v18
v_cndmask_b32 v44, v44, v45, vcc
v_mul_f32 v{neg}, v18, v17
v_mul_f32 v{jhi}, {ihi}, v18
v_mov_b32 v45, {ihi}
v_sub_f32 v{neg}, 0, v{neg}
v_fma_f32 v{jlo}, v18, v45, -v{jhi}
v_mov_b32 v45, {ilo}
v_fma_f32 v{jlo}, v18, v45, v{jlo}
v_lshlrev_b32 v{dsk}, 16, v44
v_and_b32 v{dsk1}, 0xffff0000, v44
v_add_f32 v18, v18, v18
'''.format(log2e=f32(LOG2E), lane=vLANE, neg=vNEGDTL, jhi=vJHI, jlo=vJLO, ihi=f32(I_HI), ilo=f32(I_LO), dsk=vDSK, dsk1=vDSK + 1))
b.wait(vm=2)
stamp(b)
scale = '''
v_and_b32 v176, 0x7fff7fff, v4
v_and_b32 v177, 0x7fff7fff, v5
v_pk_max_u16 v176, v176, v177
v_lshlrev_b32 v177, 16, v176
v_max_u32 v176, v176, v177
v_max_u32_dpp v176, v176, v176 row_shr:1 row_mask:0xf bank_mask:0xf
v_max_u32_dpp v176, v176, v176 row_shr:2 row_mask:0xf bank_mask:0xf
v_max_u32_dpp v176, v176, v176 row_shr:4 row_mask:0xf bank_mask:0xf
v_max_u32_dpp v176, v176, v176 row_shr:8 row_mask:0xf bank_mask:0xf
v_max_u32_dpp v176, v176, v176 row_bcast:15 row_mask:0xa bank_mask:0xf
v_max_u32_dpp v176, v176, v176 row_bcast:31 row_mask:0xc bank_mask:0xf
v_readlane_b32 s33, v176, 63
s_lshr_b32 s33, s33, 23
s_sub_u32 s33, 267, s33
s_min_u32 s33, s33, 253
s_lshl_b32 s44, s33, 23
s_sub_u32 s33, 254, s33
s_lshl_b32 s45, s33, 23
v_mul_f32 v18, s45, v18
'''.strip().split('\n')
for t in schedule(scale + gen_round(0)): b(t)
stamp(b)
b('''
buffer_load_dwordx2 v[10:11], v26, s[20:23], s48 offen
buffer_load_dwordx2 v[12:13], v26, s[20:23], s48 offen offset:896
''')
for t in schedule(kgen_mfmas(0) + gen_round(1), mfma_gap=10): b(t)
stamp(b)
m1 = kgen_mfmas(1)
su = stage_u(0)
for t in su[:5] + m1[:4] + su[5:] + m1[4:]: b(t)
b('s_mov_b32 m0, s40')
b('s_cmp_eq_u32 s30, 0')
b('s_cbranch_scc0 L_e1')

D = lambda i: ACC + i
def conv(b, T, e):
    tiles = [0, 1, 6, 7] if T == 0 else [2, 3, 4, 5]
    seq = []
    if T == 0 and e == 0: seq.append((4, C0(-1), 0))
    last = {}
    for ti, k in enumerate(tiles):
        for m in range(e, NBLK(k), 2): seq.append((ti, C0(k), m))
    for idx, (ti, c0, m) in enumerate(seq): last[ti] = idx
    NB = 4; PF = 3
    ABUF = [64 + 4 * i for i in range(NB)]
    acc = lambda ti: 176 + 16 * ti
    first_late = min(i for i, s in enumerate(seq) if s[2] >= 16)
    fq = []
    def combine(ti, groups=(0, 1)):
        L = []
        a = acc(ti)
        dp = 'row_mask:0xf bank_mask:0xf'
        chains = []
        for hh in groups:
            q0 = a + 8 * hh; q1 = q0 + 4; t = 34 + 4 * hh
            chains.append([
                'v_add_f32_dpp v%d, v%d, v%d wave_ror:1 %s' % (t, q0 + 3, q1 + 2, dp),
                'v_add_f32_dpp v%d, v%d, v%d wave_shr:1 %s bound_ctrl:0' % (q0 + 2, q0 + 3, q0 + 2, dp),
                'v_add_f32_dpp v%d, v%d, v%d wave_shr:1 %s' % (t, q1 + 3, q1 + 2, dp),
                'v_add_f32_dpp v%d, v%d, v%d wave_ror:1 %s' % (t + 1, q0 + 2, q1 + 1, dp),
                'v_add_f32_dpp v%d, v%d, v%d wave_shr:1 %s bound_ctrl:0' % (q0 + 1, q0 + 2, q0 + 1, dp),
                'v_add_f32_dpp v%d, v%d, v%d wave_shr:1 %s' % (t + 1, t, q1 + 1, dp),
                'v_add_f32_dpp v%d, v%d, v%d wave_ror:1 %s' % (t + 2, q0 + 1, q1, dp),
                'v_add_f32_dpp v%d, v%d, v%d wave_shr:1 %s bound_ctrl:0' % (q0, q0 + 1, q0, dp),
                'v_add_f32_dpp v%d, v%d, v%d wave_shr:1 %s' % (t + 2, t + 1, q1, dp),
                'ds_write_addtid_b32 v%d offset:%d' % (q0, ti * 8192 + (2 * hh) * 2048),
                'ds_write_addtid_b32 v%d offset:%d' % (t + 2, ti * 8192 + (2 * hh + 1) * 2048)])
        for tup in zip(*chains): L += list(tup)
        return L
    def combine_m1():
        a = acc(4) + 12; dp = 'row_mask:0xf bank_mask:0xf'
        return ['v_add_f32_dpp v%d, v%d, v%d wave_shr:1 %s bound_ctrl:0' % (a + 2, a + 3, a + 2, dp),
                'v_add_f32_dpp v%d, v%d, v%d wave_shr:1 %s bound_ctrl:0' % (a + 1, a + 2, a + 1, dp),
                'v_add_f32_dpp v%d, v%d, v%d wave_shr:1 %s bound_ctrl:0' % (a, a + 1, a, dp),
                'ds_write_addtid_b32 v%d offset:%d' % (a, 4 * 8192 + 3 * 2048)]
    def final(ti, c0, single=False):
        L = ['ds_read2st64_b32 v[44:45], v%d offset0:%d offset1:%d' % (vYR, ti * 32, ti * 32 + 1)]
        if not single: L += ['ds_read2st64_b32 v[46:47], v%d offset0:%d offset1:%d' % (vYR, ti * 32 + 4, ti * 32 + 5)]
        L += ['ds_read_u16_d16_hi v%d, v%d offset:%d' % (vUSK, vUS, 2 * (c0 + 188)),
              'ds_read_u16_d16_hi v%d, v%d offset:%d' % (vUSK + 1, vUS, 2 * (c0 + 188) + USTR),
              'v_add_u32 v50, %s, v%d' % (hex((c0 * 896) & 0xffffffff), vOUT),
              'WAITSLOT']
        if not single: L += ['v_pk_add_f32 v[44:45], v[44:45], v[46:47]']
        L += ['v_pk_mul_f32 v[48:49], %s, %s' % (P(vUSK), P(vDSK)),
              'v_cvt_pk_bf16_f32 v44, 0, v44', 'v_cvt_pk_bf16_f32 v45, 0, v45',
              'v_cvt_pk_bf16_f32 v48, 0, v48', 'v_cvt_pk_bf16_f32 v49, 0, v49',
              'v_pk_add_f32 v[44:45], v[44:45], v[48:49]',
              'v_cvt_pk_bf16_f32 v51, v44, v45',
              'buffer_store_dword v51, v50, s[24:27], 0 offen']
        return L
    events = []
    for ti, k in enumerate(tiles):
        L = []
        if ti == 0 and T == 0 and e == 0: L += combine_m1()
        L += combine(ti) + ['BARRIER'] + final(ti, C0(k))
        if ti == 0 and T == 0 and e == 1: L += final(4, C0(-1), single=True)
        events.append([last[ti] + 2, L])
    s2 = [x.replace('v60', 'v52').replace('v61', 'v53').replace('v62', 'v54').replace('v63', 'v55') for x in stage_u(1)] + ['s_mov_b32 m0, s40', 'BARRIER', 'S2DONE']
    pos = 2 if T == 0 else 1
    events.insert(pos, [first_late - PF - 2, s2])
    fq = [(mi, x) for mi, L in events for x in L]
    FPER = 5
    state = {'s2': False}
    loadedB = set()
    def emit_f(x):
        if x == 'BARRIER': b.barrier()
        elif x == 'S2DONE': state['s2'] = True
        elif x == 'WAITSLOT': pass
        else: b(x)
    def issue_reads(i):
        ti, c0, m = seq[i]
        if m >= 16:
            while not state['s2']: emit_f(fq.pop(0)[1])
        if m not in loadedB:
            loadedB.add(m); r = 112 + 4 * (m // 2)
            b('ds_read_b64_tr_b16 %s, v%d offset:%d' % (P(r), vCB, 128 * m + 8))
            b('ds_read_b64_tr_b16 %s, v%d offset:%d' % (P(r + 2), vCB, 128 * m))
        off = 2 * KPAD - 64 + 2 * c0 - 128 * m
        assert off >= 0
        r = ABUF[i % NB]
        b('ds_read_b64_tr_b16 %s, v%d offset:%d' % (P(r), vCA, off))
        b('ds_read_b64_tr_b16 %s, v%d offset:%d' % (P(r + 2), vCA, off + 8))
    for i in range(min(PF, len(seq))): issue_reads(i)
    started = set()
    for i, (ti, c0, m) in enumerate(seq):
        a = acc(ti)
        b('v_mfma_f32_32x32x16_bf16 %s, %s, %s, %s' % (X16(a), Q(ABUF[i % NB]), Q(112 + 4 * (m // 2)), X16(a) if ti in started else '0'))
        started.add(ti)
        if i + PF < len(seq): issue_reads(i + PF)
        n = 0
        while fq and fq[0][0] <= i and n < FPER:
            x = fq.pop(0)[1]; emit_f(x); n += 1
            if x == 'WAITSLOT': break
    while fq: emit_f(fq.pop(0)[1])

def tail(b):
    if STAMPS:
        b.wait(vm=0)
        stamp(b)
        n = nstamp[0]
        b('s_lshl_b32 s33, s2, 3\ns_add_u32 s33, s33, s28\ns_lshl_b32 s33, s33, 7\nv_mov_b32 v3, s33')
        for i in range(n):
            b('s_sub_u32 s34, s%d, s56' % (60 + 2 * i))
            b('v_mov_b32 v2, s34')
            b('global_store_dword v3, v2, s[58:59] offset:%d' % (4 * i))
        b('v_mov_b32 v2, s56')
        b('global_store_dword v3, v2, s[58:59] offset:%d' % (4 * 31))
    b('s_endpgm')

base_stamp = nstamp[0]
parts = [b]
for e in (0, 1):
    nstamp[0] = base_stamp
    p = b.fork()
    if e == 1: p.raw('L_e1:')
    send = range(8, 13) if e == 0 else range(0, 8)
    own = range(0, 8) if e == 0 else range(8, 13)
    for n_, i in enumerate(send):
        p('v_mul_f32 v%d, v%d, v%d' % (D(i), vMULT, D(i)))
    for n_, i in enumerate(send):
        p('ds_write_addtid_b32 v%d offset:%d' % (D(i), n_ * RS))
    p('s_mov_b32 m0, s43')
    stamp(p)
    p.barrier()
    for n_, i in enumerate(own):
        p('ds_read_addtid_b32 v%d offset:%d' % (34 + n_, n_ * RS))
    for n_, i in enumerate(own):
        p('v_fma_f32 v%d, v%d, v%d, v%d' % (D(i), D(i), vMULT, 34 + n_))
    dp = 'bank_mask:0xf'
    if e == 0:
        L = ['v_cvt_pk_bf16_f32 v44, v%d, v%d' % (D(0), D(1)), 'v_cvt_pk_bf16_f32 v45, v%d, v%d' % (D(2), D(3)),
             'ds_write_b64 v%d, v[44:45] offset:%d' % (vKW0, 2 * KPAD),
             'v_mov_b32 v48, v%d' % D(6),
             'v_mov_b32_dpp v48, v%d wave_rol:1 row_mask:0x8 %s' % (D(7), dp),
             'v_mov_b32_dpp v48, v%d wave_shl:1 row_mask:0xc %s' % (D(6), dp),
             'v_cvt_pk_bf16_f32 v46, v%d, v%d' % (D(4), D(4)), 'v_cvt_pk_bf16_f32 v47, v%d, v48' % D(5),
             'ds_write_b64 v%d, v[46:47] offset:%d' % (vKW0, 2 * KPAD + 512)]
    else:
        L = ['v_and_b32 v43, 1, v%d' % vLANE, 'v_cmp_eq_u32 vcc, 1, v43']
        for (s_, cur, nxt) in ((60, 8, 10), (61, 10, 11), (62, 11, 12)):
            L += ['v_mov_b32_dpp v%d, v%d wave_rol:1 row_mask:0xf %s' % (s_, D(nxt), dp),
                  'v_mov_b32_dpp v%d, v%d wave_shl:1 row_mask:0xf %s' % (s_, D(cur), dp)]
        L += ['v_cvt_pk_bf16_f32 v44, v%d, v%d' % (D(8), D(8)), 'v_cvt_pk_bf16_f32 v45, v%d, v%d' % (D(8), D(9)),
              'v_cvt_pk_bf16_f32 v46, v%d, v%d' % (D(9), D(9)), 'v_cvt_pk_bf16_f32 v47, v60, v60',
              'ds_write_b128 v%d, v[44:47] offset:%d' % (vKW1, 2 * KPAD + 1024)]
        for (r, cur, s_, off) in ((48, 10, 61, 2048), (52, 11, 62, 3072)):
            L += ['v_cndmask_b32 v63, v%d, v%d, vcc' % (D(cur), s_),
                  'v_cvt_pk_bf16_f32 v%d, v%d, v%d' % (r, D(cur), D(cur)), 'v_cvt_pk_bf16_f32 v%d, v%d, v%d' % (r + 1, D(cur), D(cur)),
                  'v_cvt_pk_bf16_f32 v%d, v63, v%d' % (r + 2, s_), 'v_cvt_pk_bf16_f32 v%d, v%d, v%d' % (r + 3, s_, s_),
                  'ds_write_b128 v%d, v[%d:%d] offset:%d' % (vKW1, r, r + 3, 2 * KPAD + off)]
    for t in schedule(L): p(t)
    p('s_mov_b32 m0, s40')
    p('s_cmp_eq_u32 s31, 0')
    p.barrier()
    stamp(p)
    p('s_cbranch_scc0 L_e%d_t1' % e)
    parts.append(p)
    st2 = nstamp[0]
    for T in (0, 1):
        nstamp[0] = st2
        q = p.fork()
        if T == 1: q.raw('L_e%d_t1:' % e)
        conv(q, T, e)
        stamp(q)
        tail(q)
        parts.append(q)
        sys.stderr.write('variant e=%d T=%d counts %s nops %d\n' % (e, T, q.count, q.nops))
sys.stderr.write('main counts %s nops %d\n' % (b.count, b.nops))

ref = open('standalone__ssm_conv_s4d__prompt.s.ref').read().split('\n')
hdr = [l for l in ref if l.startswith(';') and '@launch' not in l]
out = '\n'.join(hdr) + '\n; @launch grid=(224,1,1) block=(512,1,1) lds=%d\n' % LDS_TOTAL
out += '''.amdgcn_target "amdgcn-amd-amdhsa--gfx950"
.text
.globl %s
.p2align 8
.type %s,@function
''' % (NAME, NAME)
out += ''.join(p.text() for p in parts)
out += '''L_end:
    s_endpgm
.section .rodata,"a"
.p2align 6
.amdhsa_kernel %s
  .amdhsa_next_free_vgpr 256
  .amdhsa_next_free_sgpr 102
  .amdhsa_accum_offset 256
  .amdhsa_group_segment_fixed_size 0
  .amdhsa_kernarg_size 80
  .amdhsa_user_sgpr_count 2
  .amdhsa_user_sgpr_kernarg_segment_ptr 1
  .amdhsa_system_sgpr_workgroup_id_x 1
  .amdhsa_float_denorm_mode_32 3
.end_amdhsa_kernel
''' % NAME
import re
out = re.sub(r' ; @[rw]:\w+', '', out)
open(OUT, 'w').write(out)
```

```python
import sys, struct
from asmb import Builder
from sched import schedule

DBG = '--dbg' in sys.argv
STAMPS = '--stamps' in sys.argv or DBG
OUT = [a for a in sys.argv[1:] if not a.startswith('--')][0]
NAME = 'standalone__ssm_conv_s4d__prompt_kernel'

def f32(x): return '0x%08x' % struct.unpack('<I', struct.pack('<f', x))[0]
import numpy as np
LOG2E = 1.4426950408889634
INV2PI = 0.15915494309189535
I_HI = float(np.float32(INV2PI)); I_LO = INV2PI - I_HI

RS = 2064; BROW0 = 21
UBASE = 53 * RS; USTR = 4160
KBASE = UBASE + 4 * USTR; KSTR = 4672; KPAD = 288
LDS_TOTAL = KBASE + 4 * KSTR
M0U = 60000
SLOT = {**{c: c for c in range(8)}, 256: 8, 258: 9, 260: 10, 262: 13, 2048: 15, 512: 16, 516: 17, 1024: 18, 1536: 19, 768: 20, 772: 11, 1280: 12, 1792: 14}
ROW2SLOT = list(range(11)) + [16, 10, 13, 8, 15, 16, 17, 18, 19, 20, 11, 12, 14] + [15] * 8
C0 = lambda k: 1796 - 248 * (7 - k)
NBLK = lambda k: -(-(C0(k) // 4 + 63) // 16)
GOFF = [0, 64, 124, 188]

P = lambda r: 'v[%d:%d]' % (r, r + 1)
Q = lambda r: 'v[%d:%d]' % (r, r + 3)
X16 = lambda r: 'v[%d:%d]' % (r, r + 15)
vLANE = 1; vRAW = 2; vU = 6
vNEGDTL = 14; vJHI = 15; vJLO = 16; vMULT = 18
vKA = 20; vKB = 21; vCA = 22; vCB = 23; vYR = 24; vUS = 25; vOUT = 27; vDSK = 28; vUSK = 30; vKW0 = 32; vKW1 = 33
z, z2, z4, w1, w2, w3, w4, w8, w12, w16, ZZ, G0, G1 = [34 + 2 * i for i in range(13)]
T0, T1 = 60, 62
hz, hz2, hz4 = 64, 65, 66
hB = {j: 66 + j for j in range(1, 17)}
TMPH = list(range(83, 91))
hA = {c: 91 + s for c, s in SLOT.items()}
FB = 112; FA = 144; ACC = 176

def cmul32(d, a, b, conj=False):
    return ['v_pk_mul_f32 %s, %s, %s op_sel:[0,0] op_sel_hi:[1,0]' % (P(d), P(a), P(b)),
            'v_pk_fma_f32 %s, %s, %s, %s op_sel:[1,1,0] op_sel_hi:[0,1,1] %s' % (P(d), P(a), P(b), P(d), 'neg_hi:[1,0,0]' if conj else 'neg_lo:[1,0,0]')]
def cmul16(d, a, b, conj=False):
    return ['v_pk_mul_f16 v%d, v%d, v%d op_sel:[0,0] op_sel_hi:[1,0]' % (d, a, b),
            'v_pk_fma_f16 v%d, v%d, v%d, v%d op_sel:[1,1,0] op_sel_hi:[0,1,1] %s' % (d, a, b, d, 'neg_hi:[1,0,0]' if conj else 'neg_lo:[1,0,0]')]
def cvt16(d, a): return ['v_cvt_pk_f16_f32 v%d, v%d, v%d' % (d, a, a + 1)]
def wrB(j, r): return ['ds_write_addtid_b32 v%d offset:%d ; @w:sB' % (r, j * RS)]
def wrA(c): return ['ds_write_addtid_b32 v%d offset:%d ; @w:sA' % (hA[c], SLOT[c] * RS)]

nstamp = [0]
def stamp(b):
    if not STAMPS: return
    i = nstamp[0]; nstamp[0] += 1
    b.raw('    s_memtime s[%d:%d]' % (60 + 2 * i, 61 + 2 * i))
    b.raw('    s_waitcnt lgkmcnt(0)')
    b.lds = []; b.smem = []

def gen_round(rnd):
    L = []
    un = (lambda d, s: 'v_lshlrev_b32 v%d, 16, v%d' % (d, s)) if rnd == 0 else (lambda d, s: 'v_and_b32 v%d, 0xffff0000, v%d' % (d, s))
    L += [un(T0, vRAW), un(T0 + 1, vRAW + 1), un(G0, vRAW + 2), un(G0 + 1, vRAW + 3)]
    L += ['v_mul_f32 v%d, %s, v%d' % (T0, f32(LOG2E), T0),
          'v_exp_f32 v%d, v%d' % (T0, T0),
          'v_cvt_pk_bf16_f32 v%d, 0, v%d' % (T0, T0),
          'v_mul_f32 v%d, v%d, v%d' % (T0, T0, vNEGDTL),
          'v_exp_f32 v%d, v%d' % (T0, T0),
          'v_mul_f32 v%d, v%d, v%d' % (T1, T0 + 1, vJHI),
          'v_rndne_f32 v%d, v%d' % (T1, T1),
          'v_fma_f32 v%d, v%d, v%d, -v%d' % (T1, T0 + 1, vJHI, T1),
          'v_fma_f32 v%d, v%d, v%d, v%d' % (T1, T0 + 1, vJLO, T1),
          'v_cos_f32 v%d, v%d' % (z, T1),
          'v_sin_f32 v%d, v%d' % (z + 1, T1),
          'v_pk_mul_f32 %s, %s, %s op_sel:[0,0] op_sel_hi:[1,0]' % (P(z), P(z), P(T0))]
    L += cmul32(z2, z, z) + cmul32(z4, z2, z2) + cmul32(w1, z4, z4) + cmul32(w2, w1, w1) + cmul32(w4, w2, w2)
    L += cmul32(w8, w4, w4) + cmul32(w16, w8, w8) + cmul32(ZZ, w16, w16) + cmul32(w3, w2, w1) + cmul32(w12, w8, w4)
    L += cvt16(hz, z) + cvt16(hz2, z2) + cvt16(hz4, z4)
    L += ['s_mov_b32 m0, s41']
    for j, r in ((1, w1), (2, w2), (3, w3), (4, w4), (8, w8), (12, w12), (16, w16)):
        L += cvt16(hB[j], r) + wrB(j, hB[j])
    for b_ in (4, 8, 12):
        for a_ in (1, 2, 3):
            L += cmul16(hB[a_ + b_], hB[a_], hB[b_]) + wrB(a_ + b_, hB[a_ + b_])
    for j in range(1, 16):
        t = TMPH[j % len(TMPH)]
        L += cmul16(t, hB[j], hB[16]) + wrB(16 + j, t)
    for s in range(8):
        L += ['ds_read_b128 %s, v%d offset:%d ; @r:sB' % (Q(FB + 4 * s), vKB, 32 * s)]
    L += ['v_pk_mul_f32 %s, %s, s[44:45] op_sel:[0,0] op_sel_hi:[1,0] neg_hi:[0,1]' % (P(G0), P(G0))]
    L += cvt16(hA[0], G0)
    g = [G0, G1]
    for m in range(1, 9):
        L += cmul32(g[m & 1], g[(m - 1) & 1], ZZ, conj=True) + cvt16(hA[256 * m], g[m & 1])
    for d, a_, b_ in ((1, 0, hz), (2, 0, hz2), (4, 0, hz4), (3, 1, hz2), (5, 1, hz4), (6, 2, hz4), (7, 3, hz4),
                      (258, 256, hz2), (260, 256, hz4), (262, 258, hz4), (516, 512, hz4), (772, 768, hz4)):
        L += cmul16(hA[d], hA[a_], b_, conj=True)
    L += ['s_mov_b32 m0, s40']
    for c in sorted(SLOT): L += wrA(c)
    for s in range(8):
        L += ['ds_read_b128 %s, v%d offset:%d ; @r:sA' % (Q(FA + 4 * s), vKA, 32 * s)]
    return L

def kgen_mfmas(rnd):
    return ['v_mfma_f32_32x32x16_f16 %s, %s, %s, %s' % (X16(ACC), Q(FA + 4 * s), Q(FB + 4 * s), '0' if (rnd == 0 and s == 0) else X16(ACC)) for s in range(8)]

def stage_u(half):
    a, b_ = vU + 4 * half, vU + 4 * half + 2
    L = ['s_mov_b32 m0, s42']
    for c in range(4):
        t = T0 + c
        sel = 's46' if c % 2 == 0 else 's47'
        L += ['v_perm_b32 v%d, v%d, v%d, %s' % (t, b_ + c // 2, a + c // 2, sel),
              'ds_write_addtid_b32 v%d offset:%d' % (t, UBASE + 64 - M0U + c * USTR + 2048 * half)]
    return L

b = Builder()
b.raw(NAME + ':')
if STAMPS:
    b.raw('    s_memtime s[56:57]')
b('s_load_dwordx16 s[4:19], s[0:1], 0')
if STAMPS:
    b('s_load_dwordx2 s[58:59], s[0:1], %d' % (64 if DBG else 72))
b('s_cmp_ge_u32 s2, 224')
b('s_cbranch_scc1 L_end')
b('''
v_lshrrev_b32 v2, 6, v0
v_and_b32 v%d, 63, v0
v_readfirstlane_b32 s28, v2
s_and_b32 s33, s2, 7
s_lshr_b32 s34, s2, 3
s_and_b32 s31, s34, 1
s_lshr_b32 s34, s34, 1
s_mul_i32 s32, s33, 14
s_add_u32 s32, s32, s34
s_and_b32 s29, s28, 3
s_lshr_b32 s30, s28, 2
s_lshl_b32 s40, s28, 8
s_add_u32 s41, s40, %d
s_add_u32 s42, s40, %d
s_xor_b32 s43, s40, 0x400
s_mov_b32 s46, 0x05040100
s_mov_b32 s47, 0x07060302
''' % (vLANE, BROW0 * RS, M0U))
b('''
s_lshl_b32 s33, s32, 2
s_add_u32 s33, s33, s29
s_lshl_b32 s33, s33, 9
s_lshl_b32 s34, s30, 8
s_add_u32 s33, s33, s34
v_lshlrev_b32 v60, 2, v%d
v_add_u32 v60, s33, v60
s_mul_i32 s33, s28, %d
s_lshl_b32 s35, s32, 3
s_add_u32 s33, s33, s35
s_movk_i32 s34, 1792
v_mul_u32_u24 v61, s34, v%d
v_add_u32 v61, s33, v61
s_mov_b32 s23, 0x00020000
s_mov_b32 s27, 0x00020000
s_mov_b32 s26, %d
s_cmp_eq_u32 s31, 0
s_cselect_b32 s22, %d, s26
s_cselect_b32 s22, s26, %d
s_mov_b32 s48, %d
''' % (vLANE, 128 * 896, vLANE, 2048 * 896, 0, (C0(5) + 252) * 896, 1024 * 896))
lut = 0
for i in range(9, 25): lut |= (ROW2SLOT[i] - 8) << (4 * (i - 9))
b('''
v_and_b32 v34, 31, v{lane}
v_lshrrev_b32 v35, 5, v{lane}
v_min_u32 v36, 24, v34
v_subrev_u32 v37, 9, v36
v_lshlrev_b32 v37, 2, v37
s_mov_b32 s50, {lo}
s_mov_b32 s51, {hi}
v_lshrrev_b64 v[38:39], v37, s[50:51]
v_and_b32 v38, 15, v38
v_add_u32 v38, 8, v38
v_cmp_gt_u32 vcc, 9, v34
v_cndmask_b32 v38, v38, v34, vcc
s_movk_i32 s34, {rs}
v_lshlrev_b32 v40, 4, v35
v_add_u32 v40, s40, v40
v_mad_u32_u24 v{ka}, v38, s34, v40
v_mad_u32_u24 v{kb}, v34, s34, v40
v_add_u32 v{kb}, {b0}, v{kb}
'''.format(lane=vLANE, lo=hex(lut & 0xffffffff), hi=hex(lut >> 32), rs=RS, ka=vKA, kb=vKB, b0=BROW0 * RS))
b('''
v_bfe_u32 v41, v{lane}, 4, 1
v_bfe_u32 v42, v{lane}, 2, 2
v_and_b32 v43, 3, v{lane}
s_mul_i32 s33, s29, {kstr}
s_add_u32 s33, s33, {kbase}
s_movk_i32 s34, 248
v_mul_u32_u24 v44, s34, v41
v_add_u32 v45, v43, v35
v_lshl_add_u32 v44, v45, 6, v44
v_lshl_add_u32 v44, v42, 4, v44
v_add_u32 v{ca}, s33, v44
v_lshlrev_b32 v44, 4, v34
v_lshl_add_u32 v44, v35, 3, v44
v_add_u32 v{kw0}, s33, v44
v_lshlrev_b32 v44, 4, v{lane}
v_add_u32 v{kw1}, s33, v44
s_mul_i32 s34, s29, {ustr}
s_add_u32 s34, s34, {ub120}
v_lshlrev_b32 v44, 5, v41
v_lshl_add_u32 v44, v43, 3, v44
v_add_u32 v44, s34, v44
v_lshlrev_b32 v45, 6, v35
v_lshl_add_u32 v45, v42, 4, v45
v_sub_u32 v{cb}, v44, v45
'''.format(lane=vLANE, kstr=KSTR, kbase=KBASE, ca=vCA, cb=vCB, kw0=vKW0, kw1=vKW1, ustr=USTR, ub120=UBASE + 120))
b('''
s_lshr_b32 s34, s28, 1
s_and_b32 s35, s28, 1
s_lshl_b32 s35, s35, 5
v_add_u32 v44, s35, v34
s_lshl_b32 s36, s34, 11
v_lshlrev_b32 v45, 9, v35
v_lshl_add_u32 v45, v44, 2, v45
v_add_u32 v{yr}, s36, v45
s_lshl_b32 s36, s34, 6
s_lshr_b32 s37, s34, 1
s_lshl_b32 s37, s37, 2
s_sub_u32 s36, s36, s37
v_add_u32 v45, s36, v44
s_movk_i32 s37, {ustr2}
v_mul_u32_u24 v46, s37, v35
v_lshl_add_u32 v46, v45, 1, v46
v_add_u32 v{us}, {usb}, v46
s_movk_i32 s37, 896
v_mul_u32_u24 v46, s37, v45
v_lshl_add_u32 v46, v35, 2, v46
s_lshl_b32 s37, s32, 3
v_add_u32 v46, s37, v46
s_and_b32 s37, s34, 1
s_lshl_b32 s37, s37, 6
v_add_u32 v47, s37, v44
v_add_u32 v48, 0x40000000, v46
v_cmp_gt_u32 vcc, 4, v47
v_cndmask_b32 v{out}, v46, v48, vcc
v_mov_b32 v{usk}, 0
v_mov_b32 v{usk1}, 0
'''.format(yr=vYR, ustr2=2 * USTR, us=vUS, usb=UBASE + 64 - 376, out=vOUT, usk=vUSK, usk1=vUSK + 1))
b('''
v_mov_b32 v44, 0x3c00
v_mov_b32 v48, 0
v_mov_b32 v49, 0
v_mov_b32 v50, 0
v_mov_b32 v51, 0
s_mov_b32 m0, s41
ds_write_addtid_b32 v44 offset:0
v_cmp_gt_u32 vcc, 36, v{lane}
s_and_saveexec_b64 s[50:51], vcc
ds_write_b128 v{kw1}, v[48:51]
s_mov_b64 exec, s[50:51]
s_mul_i32 s34, s29, {ustr}
s_add_u32 s34, s34, {ubase}
v_and_b32 v45, 15, v{lane}
v_lshl_add_u32 v45, v45, 2, s34
ds_write_b32 v45, v48
'''.format(lane=vLANE, kw1=vKW1, ustr=USTR, ubase=UBASE))
b.wait(lgkm=0)
b('''
global_load_dword v2, v60, s[6:7]
global_load_dword v3, v60, s[8:9]
s_lshl_b32 s33, s32, 3
s_load_dwordx2 s[36:37], s[14:15], s33
s_load_dwordx2 s[38:39], s[16:17], s33
global_load_dword v4, v60, s[10:11]
global_load_dword v5, v60, s[12:13]
s_mov_b32 s20, s4
s_mov_b32 s21, s5
s_mov_b32 s24, s18
s_mov_b32 s25, s19
s_barrier
buffer_load_dwordx2 v[6:7], v61, s[20:23], 0 offen
buffer_load_dwordx2 v[8:9], v61, s[20:23], 0 offen offset:896
v_mov_b32 v26, v61
''')
b.wait(lgkm=0)
stamp(b)
b('''
s_lshl_b32 s33, s29, 4
s_lshr_b64 s[36:37], s[36:37], s33
s_lshl_b32 s36, s36, 16
v_mov_b32 v17, {log2e}
v_mul_f32 v18, s36, v17
v_exp_f32 v18, v18
v_cmp_gt_u32 vcc, 32, v{lane}
v_mov_b32 v44, s39
v_mov_b32 v45, s38
v_cvt_pk_bf16_f32 v18, 0, v18
v_cndmask_b32 v44, v44, v45, vcc
v_mul_f32 v{neg}, v18, v17
v_mul_f32 v{jhi}, {ihi}, v18
v_mov_b32 v45, {ihi}
v_sub_f32 v{neg}, 0, v{neg}
v_fma_f32 v{jlo}, v18, v45, -v{jhi}
v_mov_b32 v45, {ilo}
v_fma_f32 v{jlo}, v18, v45, v{jlo}
v_lshlrev_b32 v{dsk}, 16, v44
v_and_b32 v{dsk1}, 0xffff0000, v44
v_add_f32 v18, v18, v18
'''.format(log2e=f32(LOG2E), lane=vLANE, neg=vNEGDTL, jhi=vJHI, jlo=vJLO, ihi=f32(I_HI), ilo=f32(I_LO), dsk=vDSK, dsk1=vDSK + 1))
b.wait(vm=2)
stamp(b)
scale = '''
v_and_b32 v176, 0x7fff7fff, v4
v_and_b32 v177, 0x7fff7fff, v5
v_pk_max_u16 v176, v176, v177
v_lshlrev_b32 v177, 16, v176
v_max_u32 v176, v176, v177
v_max_u32_dpp v176, v176, v176 row_shr:1 row_mask:0xf bank_mask:0xf
v_max_u32_dpp v176, v176, v176 row_shr:2 row_mask:0xf bank_mask:0xf
v_max_u32_dpp v176, v176, v176 row_shr:4 row_mask:0xf bank_mask:0xf
v_max_u32_dpp v176, v176, v176 row_shr:8 row_mask:0xf bank_mask:0xf
v_max_u32_dpp v176, v176, v176 row_bcast:15 row_mask:0xa bank_mask:0xf
v_max_u32_dpp v176, v176, v176 row_bcast:31 row_mask:0xc bank_mask:0xf
v_readlane_b32 s33, v176, 63
s_lshr_b32 s33, s33, 23
s_sub_u32 s33, 267, s33
s_min_u32 s33, s33, 253
s_lshl_b32 s44, s33, 23
s_sub_u32 s33, 254, s33
s_lshl_b32 s45, s33, 23
v_mul_f32 v18, s45, v18
'''.strip().split('\n')
for t in schedule(scale + gen_round(0)): b(t)
stamp(b)
b('''
buffer_load_dwordx2 v[10:11], v26, s[20:23], s48 offen
buffer_load_dwordx2 v[12:13], v26, s[20:23], s48 offen offset:896
''')
for t in schedule(kgen_mfmas(0) + gen_round(1), mfma_gap=10): b(t)
stamp(b)
m1 = kgen_mfmas(1)
su = stage_u(0)
for t in su[:5] + m1[:4] + su[5:] + m1[4:]: b(t)
b('s_mov_b32 m0, s40')
b('s_cmp_eq_u32 s30, 0')
b('s_cbranch_scc0 L_e1')

D = lambda i: ACC + i
def conv(b, T, e):
    tiles = [0, 1, 6, 7] if T == 0 else [2, 3, 4, 5]
    seq = []
    if T == 0 and e == 0: seq.append((4, C0(-1), 0))
    last = {}
    for ti, k in enumerate(tiles):
        for m in range(e, NBLK(k), 2): seq.append((ti, C0(k), m))
    for idx, (ti, c0, m) in enumerate(seq): last[ti] = idx
    NB = 4; PF = 3
    ABUF = [64 + 4 * i for i in range(NB)]
    acc = lambda ti: 176 + 16 * ti
    first_late = min(i for i, s in enumerate(seq) if s[2] >= 16)
    fq = []
    def combine(ti, groups=(0, 1)):
        L = []
        a = acc(ti)
        dp = 'row_mask:0xf bank_mask:0xf'
        chains = []
        for hh in groups:
            q0 = a + 8 * hh; q1 = q0 + 4; t = 34 + 4 * hh
            chains.append([
                'v_add_f32_dpp v%d, v%d, v%d wave_ror:1 %s' % (t, q0 + 3, q1 + 2, dp),
                'v_add_f32_dpp v%d, v%d, v%d wave_shr:1 %s bound_ctrl:0' % (q0 + 2, q0 + 3, q0 + 2, dp),
                'v_add_f32_dpp v%d, v%d, v%d wave_shr:1 %s' % (t, q1 + 3, q1 + 2, dp),
                'v_add_f32_dpp v%d, v%d, v%d wave_ror:1 %s' % (t + 1, q0 + 2, q1 + 1, dp),
                'v_add_f32_dpp v%d, v%d, v%d wave_shr:1 %s bound_ctrl:0' % (q0 + 1, q0 + 2, q0 + 1, dp),
                'v_add_f32_dpp v%d, v%d, v%d wave_shr:1 %s' % (t + 1, t, q1 + 1, dp),
                'v_add_f32_dpp v%d, v%d, v%d wave_ror:1 %s' % (t + 2, q0 + 1, q1, dp),
                'v_add_f32_dpp v%d, v%d, v%d wave_shr:1 %s bound_ctrl:0' % (q0, q0 + 1, q0, dp),
                'v_add_f32_dpp v%d, v%d, v%d wave_shr:1 %s' % (t + 2, t + 1, q1, dp),
                'ds_write_addtid_b32 v%d offset:%d' % (q0, ti * 8192 + (2 * hh) * 2048),
                'ds_write_addtid_b32 v%d offset:%d' % (t + 2, ti * 8192 + (2 * hh + 1) * 2048)])
        for tup in zip(*chains): L += list(tup)
        return L
    def combine_m1():
        a = acc(4) + 12; dp = 'row_mask:0xf bank_mask:0xf'
        return ['v_add_f32_dpp v%d, v%d, v%d wave_shr:1 %s bound_ctrl:0' % (a + 2, a + 3, a + 2, dp),
                'v_add_f32_dpp v%d, v%d, v%d wave_shr:1 %s bound_ctrl:0' % (a + 1, a + 2, a + 1, dp),
                'v_add_f32_dpp v%d, v%d, v%d wave_shr:1 %s bound_ctrl:0' % (a, a + 1, a, dp),
                'ds_write_addtid_b32 v%d offset:%d' % (a, 4 * 8192 + 3 * 2048)]
    def final(ti, c0, single=False):
        L = ['ds_read2st64_b32 v[44:45], v%d offset0:%d offset1:%d' % (vYR, ti * 32, ti * 32 + 1)]
        if not single: L += ['ds_read2st64_b32 v[46:47], v%d offset0:%d offset1:%d' % (vYR, ti * 32 + 4, ti * 32 + 5)]
        L += ['ds_read_u16_d16_hi v%d, v%d offset:%d' % (vUSK, vUS, 2 * (c0 + 188)),
              'ds_read_u16_d16_hi v%d, v%d offset:%d' % (vUSK + 1, vUS, 2 * (c0 + 188) + USTR),
              'v_add_u32 v50, %s, v%d' % (hex((c0 * 896) & 0xffffffff), vOUT),
              'WAITSLOT']
        if not single: L += ['v_pk_add_f32 v[44:45], v[44:45], v[46:47]']
        L += ['v_pk_mul_f32 v[48:49], %s, %s' % (P(vUSK), P(vDSK)),
              'v_cvt_pk_bf16_f32 v44, 0, v44', 'v_cvt_pk_bf16_f32 v45, 0, v45',
              'v_cvt_pk_bf16_f32 v48, 0, v48', 'v_cvt_pk_bf16_f32 v49, 0, v49',
              'v_pk_add_f32 v[44:45], v[44:45], v[48:49]',
              'v_cvt_pk_bf16_f32 v51, v44, v45',
              'buffer_store_dword v51, v50, s[24:27], 0 offen']
        return L
    events = []
    for ti, k in enumerate(tiles):
        L = []
        if ti == 0 and T == 0 and e == 0: L += combine_m1()
        L += combine(ti) + ['BARRIER'] + final(ti, C0(k))
        if ti == 0 and T == 0 and e == 1: L += final(4, C0(-1), single=True)
        events.append([last[ti] + 2, L])
    s2 = [x.replace('v60', 'v52').replace('v61', 'v53').replace('v62', 'v54').replace('v63', 'v55') for x in stage_u(1)] + ['s_mov_b32 m0, s40', 'BARRIER', 'S2DONE']
    pos = 2 if T == 0 else 1
    events.insert(pos, [first_late - PF - 2, s2])
    fq = [(mi, x) for mi, L in events for x in L]
    FPER = 5
    state = {'s2': False}
    loadedB = set()
    def emit_f(x):
        if x == 'BARRIER': b.barrier()
        elif x == 'S2DONE': state['s2'] = True
        elif x == 'WAITSLOT': pass
        else: b(x)
    def issue_reads(i):
        ti, c0, m = seq[i]
        if m >= 16:
            while not state['s2']: emit_f(fq.pop(0)[1])
        if m not in loadedB:
            loadedB.add(m); r = 112 + 4 * (m // 2)
            b('ds_read_b64_tr_b16 %s, v%d offset:%d' % (P(r), vCB, 128 * m + 8))
            b('ds_read_b64_tr_b16 %s, v%d offset:%d' % (P(r + 2), vCB, 128 * m))
        off = 2 * KPAD - 64 + 2 * c0 - 128 * m
        assert off >= 0
        r = ABUF[i % NB]
        b('ds_read_b64_tr_b16 %s, v%d offset:%d' % (P(r), vCA, off))
        b('ds_read_b64_tr_b16 %s, v%d offset:%d' % (P(r + 2), vCA, off + 8))
    for i in range(min(PF, len(seq))): issue_reads(i)
    started = set()
    for i, (ti, c0, m) in enumerate(seq):
        a = acc(ti)
        b('v_mfma_f32_32x32x16_bf16 %s, %s, %s, %s' % (X16(a), Q(ABUF[i % NB]), Q(112 + 4 * (m // 2)), X16(a) if ti in started else '0'))
        started.add(ti)
        if i + PF < len(seq): issue_reads(i + PF)
        n = 0
        while fq and fq[0][0] <= i and n < FPER:
            x = fq.pop(0)[1]; emit_f(x); n += 1
            if x == 'WAITSLOT': break
    while fq: emit_f(fq.pop(0)[1])

def tail(b):
    if STAMPS:
        b.wait(vm=0)
        stamp(b)
        n = nstamp[0]
        if DBG:
            b('s_mov_b64 exec, 1\nv_mov_b32 v3, 0')
            for i in range(n):
                b('s_sub_u32 s34, s%d, s56' % (60 + 2 * i))
                b('v_mov_b32 v2, s34')
                b.raw('    global_atomic_umax v3, v2, s[58:59] offset:%d' % (4 * i))
                b('v_sub_u32 v2, 0, v2')
                b.raw('    global_atomic_umax v3, v2, s[58:59] offset:%d' % (32 + 4 * i))
            b('s_endpgm')
            return
        b('s_lshl_b32 s33, s2, 3\ns_add_u32 s33, s33, s28\ns_lshl_b32 s33, s33, 7\nv_mov_b32 v3, s33')
        for i in range(n):
            b('s_sub_u32 s34, s%d, s56' % (60 + 2 * i))
            b('v_mov_b32 v2, s34')
            b('global_store_dword v3, v2, s[58:59] offset:%d' % (4 * i))
        b('v_mov_b32 v2, s56')
        b('global_store_dword v3, v2, s[58:59] offset:%d' % (4 * 31))
    b('s_endpgm')

base_stamp = nstamp[0]
parts = [b]
for e in (0, 1):
    nstamp[0] = base_stamp
    p = b.fork()
    if e == 1: p.raw('L_e1:')
    send = range(8, 13) if e == 0 else range(0, 8)
    own = range(0, 8) if e == 0 else range(8, 13)
    for n_, i in enumerate(send):
        p('v_mul_f32 v%d, v%d, v%d' % (D(i), vMULT, D(i)))
    for n_, i in enumerate(send):
        p('ds_write_addtid_b32 v%d offset:%d' % (D(i), n_ * RS))
    p('s_mov_b32 m0, s43')
    stamp(p)
    p.barrier()
    for n_, i in enumerate(own):
        p('ds_read_addtid_b32 v%d offset:%d' % (34 + n_, n_ * RS))
    for n_, i in enumerate(own):
        p('v_fma_f32 v%d, v%d, v%d, v%d' % (D(i), D(i), vMULT, 34 + n_))
    dp = 'bank_mask:0xf'
    if e == 0:
        L = ['v_cvt_pk_bf16_f32 v44, v%d, v%d' % (D(0), D(1)), 'v_cvt_pk_bf16_f32 v45, v%d, v%d' % (D(2), D(3)),
             'ds_write_b64 v%d, v[44:45] offset:%d' % (vKW0, 2 * KPAD),
             'v_mov_b32 v48, v%d' % D(6),
             'v_mov_b32_dpp v48, v%d wave_rol:1 row_mask:0x8 %s' % (D(7), dp),
             'v_mov_b32_dpp v48, v%d wave_shl:1 row_mask:0xc %s' % (D(6), dp),
             'v_cvt_pk_bf16_f32 v46, v%d, v%d' % (D(4), D(4)), 'v_cvt_pk_bf16_f32 v47, v%d, v48' % D(5),
             'ds_write_b64 v%d, v[46:47] offset:%d' % (vKW0, 2 * KPAD + 512)]
    else:
        L = ['v_and_b32 v43, 1, v%d' % vLANE, 'v_cmp_eq_u32 vcc, 1, v43']
        for (s_, cur, nxt) in ((60, 8, 10), (61, 10, 11), (62, 11, 12)):
            L += ['v_mov_b32_dpp v%d, v%d wave_rol:1 row_mask:0xf %s' % (s_, D(nxt), dp),
                  'v_mov_b32_dpp v%d, v%d wave_shl:1 row_mask:0xf %s' % (s_, D(cur), dp)]
        L += ['v_cvt_pk_bf16_f32 v44, v%d, v%d' % (D(8), D(8)), 'v_cvt_pk_bf16_f32 v45, v%d, v%d' % (D(8), D(9)),
              'v_cvt_pk_bf16_f32 v46, v%d, v%d' % (D(9), D(9)), 'v_cvt_pk_bf16_f32 v47, v60, v60',
              'ds_write_b128 v%d, v[44:47] offset:%d' % (vKW1, 2 * KPAD + 1024)]
        for (r, cur, s_, off) in ((48, 10, 61, 2048), (52, 11, 62, 3072)):
            L += ['v_cndmask_b32 v63, v%d, v%d, vcc' % (D(cur), s_),
                  'v_cvt_pk_bf16_f32 v%d, v%d, v%d' % (r, D(cur), D(cur)), 'v_cvt_pk_bf16_f32 v%d, v%d, v%d' % (r + 1, D(cur), D(cur)),
                  'v_cvt_pk_bf16_f32 v%d, v63, v%d' % (r + 2, s_), 'v_cvt_pk_bf16_f32 v%d, v%d, v%d' % (r + 3, s_, s_),
                  'ds_write_b128 v%d, v[%d:%d] offset:%d' % (vKW1, r, r + 3, 2 * KPAD + off)]
    for t in schedule(L): p(t)
    p('s_mov_b32 m0, s40')
    p('s_cmp_eq_u32 s31, 0')
    p.barrier()
    stamp(p)
    p('s_cbranch_scc0 L_e%d_t1' % e)
    parts.append(p)
    st2 = nstamp[0]
    for T in (0, 1):
        nstamp[0] = st2
        q = p.fork()
        if T == 1: q.raw('L_e%d_t1:' % e)
        conv(q, T, e)
        stamp(q)
        tail(q)
        parts.append(q)
        sys.stderr.write('variant e=%d T=%d counts %s nops %d\n' % (e, T, q.count, q.nops))
sys.stderr.write('main counts %s nops %d\n' % (b.count, b.nops))

ref = open('standalone__ssm_conv_s4d__prompt.s.ref').read().split('\n')
hdr = [l for l in ref if l.startswith(';') and '@launch' not in l]
out = '\n'.join(hdr) + '\n; @launch grid=(224,1,1) block=(512,1,1) lds=%d\n' % LDS_TOTAL
out += '''.amdgcn_target "amdgcn-amd-amdhsa--gfx950"
.text
.globl %s
.p2align 8
.type %s,@function
''' % (NAME, NAME)
out += ''.join(p.text() for p in parts)
out += '''L_end:
    s_endpgm
.section .rodata,"a"
.p2align 6
.amdhsa_kernel %s
  .amdhsa_next_free_vgpr 256
  .amdhsa_next_free_sgpr 102
  .amdhsa_accum_offset 256
  .amdhsa_group_segment_fixed_size 0
  .amdhsa_kernarg_size 80
  .amdhsa_user_sgpr_count 2
  .amdhsa_user_sgpr_kernarg_segment_ptr 1
  .amdhsa_system_sgpr_workgroup_id_x 1
  .amdhsa_float_denorm_mode_32 3
.end_amdhsa_kernel
''' % NAME
import re
out = re.sub(r' ; @[rw]:\w+', '', out)
open(OUT, 'w').write(out)
```

```python
import sys, struct, re
import numpy as np
from asmb import Builder
from sched import schedule

args = sys.argv[1:]
def opt(name, default):
    for a in args:
        if a.startswith('--%s=' % name): return type(default)(a.split('=')[1])
    return default
MINST = '--minst' in args
STAMPS = '--stamps' in args or MINST
OUT = [a for a in args if not a.startswith('--')][0]
NAME = 'standalone__ssm_conv_s4d__prompt_kernel'
PRIO = opt('prio', 1); PF = opt('pf', 3); FPER = opt('fper', 4); CDELAY = opt('cdelay', 2)

def f32(x): return '0x%08x' % struct.unpack('<I', struct.pack('<f', x))[0]
LOG2E = 1.4426950408889634
INV2PI = 0.15915494309189535
I_HI = float(np.float32(INV2PI)); I_LO = INV2PI - I_HI

RSW = 272; WSTR = 26 * RSW; B2 = 8 * WSTR + 80
STG_END = B2 + 8 * WSTR
CONSTB = STG_END
UBASE = CONSTB + 512; USTR = 4160
LDS_TOTAL = UBASE + 4 * USTR
M0U = 64512
YB = 28416; YCH = 7168
for c_ in range(4): assert YB + YCH * c_ >= (4 + c_) * WSTR and YB + YCH * c_ + 5120 <= (5 + c_) * WSTR
PH = [0, 1152, 2368, 3520]; KPADB = 128
def boff(j): return RSW * (j - 1) if j < 16 else B2 + RSW * (j - 6)
ROWS = [0,4,1,5, 2,6,3,7, 256,260,256,260, 258,262,260,256, 512,516,1024,1536, 768,772,1280,1792, 2048,2048,2048,2048, 2048,2048,2048,2048]
G1 = [0,1,2,3,12,13,14,15,20,21,22,23,24,25,26,27]; G2 = [4,5,6,7,8,9,10,11,16,17,18,19,28,29,30,31]
_free = {}
for o in [RSW * r for r in range(15, 26)] + [B2 + RSW * r for r in range(0, 10)]: _free.setdefault((o // 16) % 16, []).append(o)
s1 = {ROWS[i] for i in G1}; s2 = {ROWS[i] for i in G2}
only1 = sorted(s1 - s2); only2 = sorted(s2 - s1); rest = sorted(s1 & s2)
AOFF = {}
for res, lst in _free.items():
    if len(lst) == 2: AOFF[only1.pop()] = lst[0]; AOFF[only2.pop()] = lst[1]
for (res, lst), c in zip([(r, l) for r, l in _free.items() if len(l) == 1], only1 + only2 + rest): AOFF[c] = lst[0]
for G in (G1, G2):
    s = {ROWS[i] for i in G}; assert len({(AOFF[c] // 16) % 16 for c in s}) == len(s)
assert len(set(AOFF.values())) == 21 and max(AOFF.values()) < 65536 and boff(31) < 65536
TILES = {0: [-192, 64, 320, 1536, 1792], 1: [544, 800, 1056, 1312]}
NBLK = lambda c0: -(-(c0 // 4 + 64) // 16)
UCLAMP = 1568

P = lambda r: 'v[%d:%d]' % (r, r + 1)
Q = lambda r: 'v[%d:%d]' % (r, r + 3)
X16 = lambda r: 'v[%d:%d]' % (r, r + 15)
vRAW = 2; vU = 226
vNEGDTL = 14; vJHI = 15; vJLO = 16; vMULT = 18
vKA = 20; vKB = 21; vCA = 22; vCB = 23; vYR = 24; vUS = 25; vUOFF = 26; vOUT = 27; vODD = 28; vOUT2 = 29; vKW0 = 32; vPADW = 0
FB = 112; FA = 144; ACC = 176
class Regs: pass
def mkregs(base32, base16):
    r = Regs()
    (r.z, r.z2, r.z4, r.w1, r.w2, r.w3, r.w4, r.w8, r.w12, r.w16, r.ZZ, r.G0, r.G1, r.T0, r.T1) = [base32 + 2 * i for i in range(15)]
    r.hz, r.hz2, r.hz4 = base16, base16 + 1, base16 + 2
    return r
R0 = mkregs(34, 64); R1 = mkregs(192, 222)
hB = {j: 66 + j for j in range(1, 17)}
TMPH = list(range(83, 91))
hA = {c: 91 + i for i, c in enumerate(sorted(AOFF))}

def cmul32(d, a, b, conj=False):
    return ['v_pk_mul_f32 %s, %s, %s op_sel:[0,0] op_sel_hi:[1,0]' % (P(d), P(a), P(b)),
            'v_pk_fma_f32 %s, %s, %s, %s op_sel:[1,1,0] op_sel_hi:[0,1,1] %s' % (P(d), P(a), P(b), P(d), 'neg_hi:[1,0,0]' if conj else 'neg_lo:[1,0,0]')]
def cmul16(d, a, b, conj=False):
    return ['v_pk_mul_f16 v%d, v%d, v%d op_sel:[0,0] op_sel_hi:[1,0]' % (d, a, b),
            'v_pk_fma_f16 v%d, v%d, v%d, v%d op_sel:[1,1,0] op_sel_hi:[0,1,1] %s' % (d, a, b, d, 'neg_hi:[1,0,0]' if conj else 'neg_lo:[1,0,0]')]
def cvt16(d, a): return ['v_cvt_pk_f16_f32 v%d, v%d, v%d' % (d, a, a + 1)]
def wrB(j, r): return ['ds_write_addtid_b32 v%d offset:%d ; @w:sB' % (r, boff(j))]
def wrA(c): return ['ds_write_addtid_b32 v%d offset:%d ; @w:sA' % (hA[c], AOFF[c])]

nstamp = [0]
def stamp(b, force=False):
    if not STAMPS or (MINST and not force): return
    i = nstamp[0]; nstamp[0] += 1
    assert 60 + 2 * i + 1 <= 95
    b.raw('    s_memtime s[%d:%d]' % (60 + 2 * i, 61 + 2 * i))
    b.raw('    s_waitcnt lgkmcnt(0)')
    b.lds = []; b.smem = []

def gen_head(rnd):
    r = (R0, R1)[rnd]
    un = (lambda d, s: 'v_lshlrev_b32 v%d, 16, v%d' % (d, s)) if rnd == 0 else (lambda d, s: 'v_and_b32 v%d, 0xffff0000, v%d' % (d, s))
    L = [un(r.T0, vRAW), un(r.T0 + 1, vRAW + 1), un(r.G0, vRAW + 2), un(r.G0 + 1, vRAW + 3)]
    L += ['v_mul_f32 v%d, %s, v%d' % (r.T0, f32(LOG2E), r.T0),
          'v_exp_f32 v%d, v%d' % (r.T0, r.T0),
          'v_cvt_pk_bf16_f32 v%d, 0, v%d' % (r.T0, r.T0),
          'v_mul_f32 v%d, v%d, v%d' % (r.T0, r.T0, vNEGDTL),
          'v_exp_f32 v%d, v%d' % (r.T0, r.T0),
          'v_mul_f32 v%d, v%d, v%d' % (r.T1, r.T0 + 1, vJHI),
          'v_rndne_f32 v%d, v%d' % (r.T1, r.T1),
          'v_fma_f32 v%d, v%d, v%d, -v%d' % (r.T1, r.T0 + 1, vJHI, r.T1),
          'v_fmac_f32 v%d, v%d, v%d' % (r.T1, r.T0 + 1, vJLO),
          'v_cos_f32 v%d, v%d' % (r.z, r.T1),
          'v_sin_f32 v%d, v%d' % (r.z + 1, r.T1),
          'v_pk_mul_f32 %s, %s, %s op_sel:[0,0] op_sel_hi:[1,0]' % (P(r.z), P(r.z), P(r.T0))]
    L += cmul32(r.z2, r.z, r.z) + cmul32(r.z4, r.z2, r.z2) + cmul32(r.w1, r.z4, r.z4) + cmul32(r.w2, r.w1, r.w1) + cmul32(r.w4, r.w2, r.w2)
    L += cmul32(r.w8, r.w4, r.w4) + cmul32(r.w16, r.w8, r.w8) + cmul32(r.ZZ, r.w16, r.w16) + cmul32(r.w3, r.w2, r.w1) + cmul32(r.w12, r.w8, r.w4)
    L += cvt16(r.hz, r.z) + cvt16(r.hz2, r.z2) + cvt16(r.hz4, r.z4)
    L += ['v_pk_mul_f32 %s, %s, s[44:45] op_sel:[0,0] op_sel_hi:[1,0] neg_hi:[0,1]' % (P(r.G0), P(r.G0))]
    return L
def gen_A(rnd):
    r = (R0, R1)[rnd]
    L = cvt16(hA[0], r.G0) + wrA(0)
    for d, a_, b_ in ((1, 0, r.hz), (2, 0, r.hz2), (4, 0, r.hz4), (3, 1, r.hz2), (5, 1, r.hz4), (6, 2, r.hz4), (7, 3, r.hz4)):
        L += cmul16(hA[d], hA[a_], b_, conj=True) + wrA(d)
    g = [r.G0, r.G1]
    for m in range(1, 9):
        L += cmul32(g[m & 1], g[(m - 1) & 1], r.ZZ, conj=True) + cvt16(hA[256 * m], g[m & 1]) + wrA(256 * m)
    for d, a_, b_ in ((258, 256, r.hz2), (260, 256, r.hz4), (262, 258, r.hz4), (516, 512, r.hz4), (772, 768, r.hz4)):
        L += cmul16(hA[d], hA[a_], b_, conj=True) + wrA(d)
    return L
def rd_A(): return ['ds_read_b128 %s, v%d offset:%d ; @r:sA' % (Q(FA + 4 * s), vKA, 32 * s) for s in range(8)]
def gen_B(rnd):
    r = (R0, R1)[rnd]
    L = []
    for j, x in ((1, r.w1), (2, r.w2), (3, r.w3), (4, r.w4), (8, r.w8), (12, r.w12), (16, r.w16)):
        L += cvt16(hB[j], x) + wrB(j, hB[j])
    for b_ in (4, 8, 12):
        for a_ in (1, 2, 3):
            L += cmul16(hB[a_ + b_], hB[a_], hB[b_]) + wrB(a_ + b_, hB[a_ + b_])
    for j in range(1, 16):
        t = TMPH[j % len(TMPH)]
        L += cmul16(t, hB[j], hB[16]) + wrB(16 + j, t)
    return L
def rd_B(): return ['ds_read_b128 %s, v%d offset:%d ; @r:sB' % (Q(FB + 4 * s), vKB, 32 * s) for s in range(8)]
def kgen_mfmas(rnd):
    return ['v_mfma_f32_32x32x16_f16 %s, %s, %s, %s' % (X16(ACC), Q(FA + 4 * s), Q(FB + 4 * s), '0' if (rnd == 0 and s == 0) else X16(ACC)) for s in range(8)]
def stage_u(k, t0):
    a, b_ = vU + 4 * k, vU + 4 * k + 2
    L = []
    for c in range(4):
        L += ['v_perm_b32 v%d, v%d, v%d, %s' % (t0 + c, b_ + c // 2, a + c // 2, 's46' if c % 2 == 0 else 's47')]
    for c in range(4):
        off = UBASE + 64 - M0U + c * USTR + 1024 * k; assert off < 65536
        L += ['ds_write_addtid_b32 v%d offset:%d' % (t0 + c, off)]
    return L
def merge(*streams):
    items = []
    for s in streams:
        n = len(s)
        items += [((i + 0.5) / n, x) for i, x in enumerate(s)]
    items.sort(key=lambda t: t[0])
    return [x for _, x in items]

b = Builder()
b.raw(NAME + ':')
if STAMPS: b.raw('    s_memtime s[56:57]\n    s_memrealtime s[98:99]')
b('s_load_dwordx16 s[4:19], s[0:1], 0')
if STAMPS: b('s_load_dwordx2 s[58:59], s[0:1], 72')
b('''
s_and_b32 s33, s2, 7
s_cmp_eq_u32 s33, 7
s_cbranch_scc1 L_end
s_cmp_ge_u32 s2, 256
s_cbranch_scc1 L_end
v_lshrrev_b32 v2, 6, v0
v_and_b32 v1, 63, v0
v_readfirstlane_b32 s28, v2
s_lshr_b32 s34, s2, 3
s_and_b32 s31, s34, 1
s_lshr_b32 s34, s34, 1
s_lshl_b32 s32, s33, 4
s_add_u32 s32, s32, s34
s_and_b32 s29, s28, 3
s_lshr_b32 s30, s28, 2
s_lshl_b32 s33, s32, 2
s_add_u32 s33, s33, s29
s_lshl_b32 s33, s33, 9
s_lshl_b32 s34, s30, 8
s_add_u32 s33, s33, s34
v_lshl_add_u32 v60, v1, 2, s33
s_lshl_b32 s35, s32, 3
v_and_b32 v34, 31, v1
s_mul_i32 s33, s29, %d
s_add_u32 s33, s33, s35
s_movk_i32 s34, 1792
v_mul_u32_u24 v26, s34, v1
v_add_u32 v26, s33, v26
s_lshr_b32 s33, s2, 3
s_lshl_b32 s33, s33, 2
s_add_u32 s33, s33, s29
s_lshl_b32 s33, s33, 4
v_and_b32 v62, 15, v1
v_add_u32 v62, s33, v62
s_movk_i32 s34, 896
v_mul_u32_u24 v62, s34, v62
v_add_u32 v62, s35, v62
s_mov_b32 s48, %d
s_mov_b32 s23, 0x00020000
s_mov_b32 s27, 0x00020000
s_mov_b32 s26, %d
s_cmp_eq_u32 s31, 0
s_cselect_b32 s22, s26, %d
''' % (128 * 896, 512 * 896, 2048 * 896, UCLAMP * 896))
b.wait(lgkm=0)
stamp(b)
b('''
global_load_dword v2, v60, s[6:7]
global_load_dword v3, v60, s[8:9]
s_load_dwordx2 s[36:37], s[14:15], s35
s_load_dwordx2 s[38:39], s[16:17], s35
global_load_dword v4, v60, s[10:11]
global_load_dword v5, v60, s[12:13]
s_mov_b32 s20, s4
s_mov_b32 s21, s5
s_cmp_eq_u32 s30, 0
s_cbranch_scc1 L_nopf
''')
so = ['0', 's48', 's49', 's54']
ul = ['buffer_load_dwordx2 %s, v26, s[20:23], %s offen%s' % (P(vU + 2 * i), so[i // 2], ' offset:896' if i & 1 else '') for i in range(8)]
b.raw('    global_load_dword v254, v62, s[4:5]')
b('L_nopf:\ns_barrier\ns_cbranch_scc0 L_nou')
for x in ul[:4]: b.raw('    ' + x)
b('L_nou:')
code = [(AOFF[c] // RSW if AOFF[c] < B2 else 32 + (AOFF[c] - B2) // RSW) for c in ROWS[:30]]
luts = [sum(code[10 * k + i] << (6 * i) for i in range(10)) for k in range(3)]
b('''
v_min_u32 v36, 29, v34
v_mul_u32_u24 v37, 6, v36
s_mov_b32 s52, %s
s_mov_b32 s53, %s
v_lshrrev_b64 v[38:39], v37, s[52:53]
v_subrev_u32 v37, 60, v37
s_mov_b32 s52, %s
s_mov_b32 s53, %s
v_lshrrev_b64 v[40:41], v37, s[52:53]
v_cmp_gt_u32 vcc, 10, v36
v_cndmask_b32 v38, v40, v38, vcc
v_subrev_u32 v37, 60, v37
s_mov_b32 s52, %s
s_mov_b32 s53, %s
v_lshrrev_b64 v[40:41], v37, s[52:53]
v_cmp_gt_u32 vcc, 20, v36
v_cndmask_b32 v38, v40, v38, vcc
v_and_b32 v39, 31, v38
v_bfe_u32 v38, v38, 5, 1
s_movk_i32 s34, %d
v_mul_u32_u24 v20, s34, v39
s_mov_b32 s34, %d
v_mad_u32_u24 v20, v38, s34, v20
''' % (hex(luts[0] & 0xffffffff), hex(luts[0] >> 32), hex(luts[1] & 0xffffffff), hex(luts[1] >> 32), hex(luts[2] & 0xffffffff), hex(luts[2] >> 32), RSW, B2))
b('''
s_mov_b32 s24, s18
s_mov_b32 s25, s19
s_mov_b32 s49, {q2}
s_mov_b32 s54, {q3}
s_mul_i32 s40, s28, {wstr}
s_mul_i32 s41, s29, {wstr}
s_mul_i32 s42, s29, {ych}
s_add_u32 s42, s42, {yb}
s_lshl_b32 s33, s29, 8
s_add_u32 s55, s33, {m0u}
s_mov_b32 s46, 0x05040100
s_mov_b32 s47, 0x07060302
v_lshrrev_b32 v35, 5, v1
v_lshl_add_u32 v40, v35, 4, s40
v_add_u32 v20, v20, v40
s_movk_i32 s34, {rsw}
v_mad_u32_u24 v21, v34, s34, v40
v_subrev_u32 v21, {rsw}, v21
v_bfe_u32 v41, v1, 4, 1
s_mov_b32 s34, {bhi}
v_mad_u32_u24 v21, v41, s34, v21
s_sub_u32 s33, s40, {cshift}
s_and_b32 s33, s33, 0xf0
s_add_u32 s33, s33, {constb}
v_writelane_b32 v21, s33, 0
s_add_u32 s33, s33, 16
v_writelane_b32 v21, s33, 32
v_and_b32 v43, 3, v1
v_and_b32 v36, 1, v1
v_bfe_u32 v42, v1, 1, 1
s_movk_i32 s33, {ph1}
s_movk_i32 s34, {ph2}
v_mul_u32_u24 v44, s33, v36
v_mad_u32_u24 v44, v42, s34, v44
v_lshrrev_b32 v45, 2, v34
v_add_u32 v45, v45, v35
v_lshl_add_u32 v44, v45, 4, v44
v_add_u32 v22, s41, v44
v_mul_u32_u24 v44, s34, v35
v_lshl_add_u32 v44, v34, 2, v44
v_add_u32 v32, s41, v44
v_mul_u32_u24 v44, s33, v41
v_mad_u32_u24 v44, v35, s34, v44
v_and_b32 v45, 15, v1
v_lshl_add_u32 v44, v45, 3, v44
v_add_u32 v0, s41, v44
v_bfe_u32 v42, v1, 2, 2
s_mul_i32 s34, s29, {ustr}
s_add_u32 s33, s34, {ub96}
v_lshlrev_b32 v44, 5, v41
v_lshl_add_u32 v44, v43, 3, v44
v_add_u32 v44, s33, v44
v_lshlrev_b32 v46, 6, v35
v_lshl_add_u32 v46, v42, 3, v46
v_sub_u32 v23, v44, v46
s_add_u32 s34, s34, {ubase}
v_lshl_add_u32 v45, v45, 2, s34
v_mov_b32 v30, 0
v_mov_b32 v31, 0
ds_write_b32 v45, v30
v_mov_b32 v44, 0x3c00
v_lshlrev_b32 v45, 2, v1
v_add_u32 v46, {constb}, v45
ds_write2st64_b32 v46, v44, v44 offset0:0 offset1:1
v_bfe_i32 v28, v1, 0, 1
s_lshl_b32 s33, s29, 8
s_add_u32 s33, s33, {yb}
v_add_u32 v24, s33, v45
s_lshl_b32 s33, s29, 6
v_add_u32 v45, s33, v1
v_lshlrev_b32 v46, 1, v45
v_add_u32 v25, {usb}, v46
s_movk_i32 s34, 896
v_mul_u32_u24 v46, s34, v45
v_add_u32 v27, s35, v46
v_subrev_u32 v46, 32, v45
v_and_b32 v46, 0x40000000, v46
v_add_u32 v29, v27, v46
s_mov_b32 m0, s40
'''.format(q2=1024 * 896, q3=1536 * 896, wstr=WSTR, yb=YB, ych=YCH, m0u=M0U, rsw=RSW, bhi=B2 - 5 * RSW, cshift=(16 + CONSTB) % 256, constb=CONSTB,
           ph1=PH[1], ph2=PH[2], ustr=USTR, ub96=UBASE + 96, ubase=UBASE, usb=UBASE + 64 - 384))
b.wait(lgkm=0)
stamp(b)
b('''
s_lshl_b32 s33, s29, 4
s_lshr_b64 s[36:37], s[36:37], s33
s_lshl_b32 s36, s36, 16
v_mov_b32 v46, {log2e}
v_mul_f32 v18, s36, v46
v_exp_f32 v18, v18
s_lshl_b32 s50, s38, 16
s_and_b32 s51, s38, 0xffff0000
s_lshl_b32 s52, s39, 16
s_and_b32 s53, s39, 0xffff0000
v_cvt_pk_bf16_f32 v18, 0, v18
v_mul_f32 v14, {nlog2e}, v18
v_mul_f32 v15, {ihi}, v18
v_mov_b32 v45, {ihi}
v_fma_f32 v16, v18, v45, -v15
v_mov_b32 v45, {ilo}
v_fmac_f32 v16, v18, v45
v_add_f32 v18, v18, v18
'''.format(log2e=f32(LOG2E), nlog2e=f32(-LOG2E), ihi=f32(I_HI), ilo=f32(I_LO)))
b.raw('    s_waitcnt vmcnt(4)')
b('s_cmp_eq_u32 s30, 0\ns_cbranch_scc1 L_w7')
b.raw('    s_waitcnt vmcnt(1)')
b('L_w7:')
b.vm = []
stamp(b)
if PRIO: b('s_setprio 3')
scale = '''
v_and_b32 v176, 0x7fff7fff, v4
v_and_b32 v177, 0x7fff7fff, v5
v_pk_max_u16 v176, v176, v177
v_lshlrev_b32 v177, 16, v176
v_max_u32 v176, v176, v177
v_max_u32_dpp v176, v176, v176 row_shr:1 row_mask:0xf bank_mask:0xf
v_max_u32_dpp v176, v176, v176 row_shr:2 row_mask:0xf bank_mask:0xf
v_max_u32_dpp v176, v176, v176 row_shr:4 row_mask:0xf bank_mask:0xf
v_max_u32_dpp v176, v176, v176 row_shr:8 row_mask:0xf bank_mask:0xf
v_max_u32_dpp v176, v176, v176 row_bcast:15 row_mask:0xa bank_mask:0xf
v_max_u32_dpp v176, v176, v176 row_bcast:31 row_mask:0xc bank_mask:0xf
v_readlane_b32 s33, v176, 63
s_lshr_b32 s33, s33, 23
s_sub_u32 s33, 267, s33
s_min_u32 s33, s33, 253
s_lshl_b32 s44, s33, 23
s_sub_u32 s33, 254, s33
s_lshl_b32 s45, s33, 23
v_mul_f32 v18, s45, v18
'''.strip().split('\n')
ph1 = schedule(scale + gen_head(0) + gen_A(0))
ph2 = merge(schedule(gen_B(0)), rd_A(), schedule(gen_head(1)))
ph3 = rd_B()[:4] + merge(schedule(gen_A(1)), rd_B()[4:] + kgen_mfmas(0))
ph4 = merge(schedule(gen_B(1)), rd_A())
allk = ph1 + ph2 + ['MID'] + ph3 + ph4
PP = [int(len(allk) * float(x)) for x in opt('pp', '0.25,0.5,0.75').split(',')]
UP = [int(len(allk) * float(x)) for x in opt('up', '0.17,0.34,0.51,0.68').split(',')]
for i, t in enumerate(allk):
    for k, pt in enumerate(UP):
        if i == pt:
            b('s_cmp_eq_u32 s30, 0\ns_cbranch_scc0 L_nu%d' % k)
            b.raw('    ' + ul[4 + k])
            b('L_nu%d:' % k)
    for k, pt in enumerate(PP):
        if i == pt and PRIO: b('s_setprio %d' % (2 - k))
    if t == 'MID': stamp(b)
    else: b(t)
stamp(b)
for t in rd_B(): b(t)
m1 = kgen_mfmas(1)
b('s_cmp_eq_u32 s30, 0')
b('s_cbranch_scc0 L_M')

D = lambda i: ACC + i
NX = 13
BF = lambda m: (112 + 4 * m) if m < 16 else (176 + 4 * (m - 16))
def rdB_lines(m): return ['ds_read_b64_tr_b16 %s, v%d offset:%d' % (P(BF(m)), vCB, 128 * m + 32), 'ds_read_b64_tr_b16 %s, v%d offset:%d' % (P(BF(m) + 2), vCB, 128 * m)]

def kfin_parts():
    dp = 'bank_mask:0xf'
    cv = lambda d, x, y: 'v_cvt_pk_bf16_f32 v%d, v%d, v%d' % (d, x, y)
    fm = lambda i: 'v_fma_f32 v%d, v%d, v%d, v%d' % (D(i), D(i), vMULT, 192 + i)
    wr = lambda r, ph, off: 'ds_write_addtid_b32 v%d offset:%d' % (r, KPADB + PH[ph] + off)
    nx = lambda s_, cur, nxt: ['v_mov_b32_dpp v%d, v%d wave_rol:1 row_mask:0xf %s' % (s_, D(nxt), dp),
                               'v_mov_b32_dpp v%d, v%d wave_shl:1 row_mask:0xf %s' % (s_, D(cur), dp)]
    p0 = [fm(0), fm(1), fm(2), fm(3), cv(206, D(0), D(1)), cv(207, D(2), D(3)),
          'ds_write_b32 v%d, v206 offset:%d' % (vKW0, KPADB), 'ds_write_b32 v%d, v207 offset:%d' % (vKW0, KPADB + PH[1])]
    p1 = [fm(7), fm(8), fm(4), fm(5), fm(6), 'v_mov_b32 v210, v%d' % D(7), cv(208, D(4), D(5)),
          'ds_write_b32 v%d, v208 offset:%d' % (vKW0, KPADB + 128),
          'v_mov_b32_dpp v210, v%d wave_rol:1 row_mask:0x8 %s' % (D(8), dp), fm(10), fm(9),
          'v_mov_b32_dpp v210, v%d wave_shl:1 row_mask:0xc %s' % (D(7), dp),
          cv(209, D(6), 210), 'ds_write_b32 v%d, v209 offset:%d' % (vKW0, KPADB + 128 + PH[1])]
    n8 = nx(211, 8, 10)
    p2 = [n8[0], cv(212, D(8), D(9)), fm(11), n8[1], wr(212, 0, 256), wr(212, 1, 256), cv(213, D(8), 211), cv(214, D(9), 211), wr(213, 2, 256), wr(214, 3, 256)]
    parts = [(256, p0), (512, p1), (1024, p2)]
    for (r, cur, nxt, off, lim) in ((215, 10, 11, 512, 1536), (219, 11, 12, 768, 2048)):
        n = nx(r, cur, nxt)
        L = ([fm(12)] if cur == 10 else []) + [n[0], 's_nop 0', n[1], 's_nop 0', cv(r + 2, D(cur), r), 'v_bfi_b32 v%d, v%d, v%d, v%d' % (r + 1, vODD, r, D(cur)),
             wr(r + 2, 1, off), cv(r + 3, D(cur), r + 1), wr(r + 2, 2, off), wr(r + 2, 3, off), wr(r + 3, 0, off)]
        parts.append((lim, [x for x in L if x != 's_nop 0']))
    return parts

def conv_mfma(b, T, nB0):
    tiles = TILES[T]
    seq = []
    for ti, c0 in enumerate(tiles):
        ms = list(range(NBLK(c0)))
        if ti == 0 and T == 1 and opt('desc0', 1): ms = ms[::-1]
        if ti == 1 and T == 0 and opt('desc0', 1): ms = ms[::-1]
        seq += [(ti, c0, m) for m in ms]
    last = {}
    for idx, (ti, c0, m) in enumerate(seq): last[ti] = idx
    NB = 4
    ABUF = [240 + 4 * i for i in range(NB)]
    acc = lambda ti: 64 + 16 * (ti % 3)
    dp = 'row_mask:0xf bank_mask:0xf'
    A2 = lambda par, g: 36 + 8 * par + g
    A1 = lambda par, g: 40 + 8 * par + g
    def combine(ti, prev, groups):
        a = acc(ti); par = ti & 1
        L = []
        lv = [(lambda g: a + 4 * g + 3, lambda g: a + 4 * g + 2, lambda g: A2(par, g)),
              (lambda g: A2(par, g), lambda g: a + 4 * g + 1, lambda g: A1(par, g)),
              (lambda g: A1(par, g), lambda g: a + 4 * g, lambda g: 52 + g)]
        for li, (src, add, dst) in enumerate(lv):
            firsts = []; seconds = []
            for g in groups:
                p = src(g - 1) if g > groups[0] else (prev[li] if prev else None)
                if p is not None:
                    firsts.append('v_add_f32_dpp v%d, v%d, v%d wave_ror:1 %s' % (dst(g), p, add(g), dp))
                    seconds.append('v_add_f32_dpp v%d, v%d, v%d wave_shr:1 %s' % (dst(g), src(g), add(g), dp))
                else:
                    seconds.append('v_add_f32_dpp v%d, v%d, v%d wave_shr:1 %s bound_ctrl:0' % (dst(g), src(g), add(g), dp))
            L += firsts + seconds
        L.append('M0Y')
        for g in groups: L.append('ds_write_addtid_b32 v%d offset:%d' % (52 + g, ti * 1024 + g * 256))
        return L + (['MARK'] + ['GAP'] * opt('bgap', 2) + ['BAR'] if len(groups) > 1 else []), (a + 15, A2(par, 3), A1(par, 3))
    fq = []
    prev = None
    for ti, c0 in enumerate(tiles):
        if c0 in (544, 1536): prev = None
        L, prev = combine(ti, prev, (3,) if c0 < 0 else (0, 1, 2, 3))
        fq += [(last[ti] + CDELAY, x) for x in L]
    kq = [(lim, x) for lim, L in kfin_parts() for x in L]
    order = []
    for _, _, m in seq:
        if m not in order: order.append(m)
    loaded = set(order[:nB0])
    bq = [(m, x) for m in order[nB0:] for x in rdB_lines(m)]
    st = {'bars': 0, 'm0': 'k'}
    S2BAR = 1
    def setm0(w):
        if st['m0'] != w:
            b('s_mov_b32 m0, %s' % ('s41' if w == 'k' else 's42')); st['m0'] = w
    def emit_k():
        x = kq.pop(0)[1]
        if 'addtid' in x: setm0('k')
        b(x)
    def emit_f(x):
        if x == 'GAP' or x == 'M0Y': return
        if x == 'MARK':
            b.lds[-1] = b.lds[-1] | {('x', 'ymark')}; return
        if x == 'BAR':
            n = b._need(b.lds, {('x', 'ymark')})
            if n is not None: b.wait(lgkm=n)
            b('s_barrier'); st['bars'] += 1; return
        if 'addtid' in x: setm0('y')
        b(x)
    def emit_b():
        m, x = bq.pop(0)
        if m >= 16:
            while kq: emit_k()
        b(x)
        if not bq or bq[0][0] != m: loaded.add(m)
    def issue_reads(i):
        ti, c0, m = seq[i]
        if m >= 16:
            while st['bars'] < S2BAR: emit_f(fq.pop(0)[1])
        while m not in loaded: emit_b()
        maxtap = c0 - 64 * m - 32 + 224 + 63
        lims = [0, 256, 512, 1024, 1536, 2048]
        while kq and lims[lims.index(kq[0][0]) - 1] <= maxtap: emit_k()
        off = KPADB + (c0 - 64 * m - 32) // 2
        assert off >= 0 and off % 16 == 0
        b('ds_read_b128 %s, v%d offset:%d' % (Q(ABUF[i % NB]), vCA, off))
    for i in range(PF): issue_reads(i)
    stamp(b, True)
    started = set()
    for i, (ti, c0, m) in enumerate(seq):
        a = acc(ti)
        b('v_mfma_f32_32x32x16_bf16 %s, %s, %s, %s' % (X16(a), Q(ABUF[i % NB]), Q(BF(m)), X16(a) if ti in started else '0'))
        started.add(ti)
        nb = len(bq) + len(kq)
        if i + PF < len(seq): issue_reads(i + PF)
        n = nb - len(bq) - len(kq)
        while fq and fq[0][0] <= i and n < (opt('fper0', 6) if st['bars'] < 1 else FPER):
            x = fq.pop(0)[1]; emit_f(x); n += 1
            if x == 'GAP': break
        while kq and n < FPER: emit_k(); n += 1
        if n == 0:
            for _ in range(opt('bper', 1)):
                if bq and (bq[0][0] < 16 or st['bars'] >= S2BAR): emit_b()
    stamp(b, True)
    while fq: emit_f(fq.pop(0)[1])
    return order

def conv_fin(b, T):
    tiles = TILES[T]
    def pre_rd(tis):
        for ti in tis:
            for c in range(4): b('ds_read_u16_d16_hi v%d, v%d offset:%d' % (64 + 4 * ti + c, vUS, 2 * (tiles[ti] + 192) + c * USTR))
    def pre_m(tis):
        for ti in tis:
            r = 64 + 4 * ti
            for c in range(4): b('v_mul_f32 v%d, s%d, v%d' % (r + c, 50 + c, r + c))
            for c in range(4): b('v_cvt_pk_bf16_f32 v%d, 0, v%d' % (r + c, r + c))
    def yrd(ti, r): return ['ds_read2st64_b32 v[%d:%d], v%d offset0:%d offset1:%d' % (r, r + 1, vYR, ti * 4, ti * 4 + 28),
                            'ds_read2st64_b32 v[%d:%d], v%d offset0:%d offset1:%d' % (r + 2, r + 3, vYR, ti * 4 + 56, ti * 4 + 84)]
    def out(ti, y):
        c0 = tiles[ti]; r = 64 + 4 * ti
        if c0 >= 0:
            b('s_mov_b32 s33, %d' % (c0 * 896)); vo, so_ = (vOUT2 if c0 in (544, 1536) else vOUT), 's33'
        else: vo, so_ = 42, '0'
        for c in range(4): b('v_cvt_pk_bf16_f32 v%d, 0, v%d' % (y + c, y + c))
        for c in range(4): b('v_add_f32 v%d, v%d, v%d' % (y + c, y + c, r + c))
        b('v_cvt_pk_bf16_f32 v%d, v%d, v%d\nv_cvt_pk_bf16_f32 v%d, v%d, v%d' % (r, y, y + 1, r + 1, y + 2, y + 3))
        b('buffer_store_dwordx2 v[%d:%d], v%d, s[24:27], %s offen' % (r, r + 1, vo, so_))
    low = [ti for ti, c0 in enumerate(tiles) if c0 + 256 <= 1024]
    high = [ti for ti in range(len(tiles)) if ti not in low]
    pre_rd(low)
    if T == 0: b('v_add_u32 v42, %s, v%d' % (hex((-192 * 896) & 0xffffffff), vOUT))
    pre_m(low)
    stamp(b)
    for t in stage_u(2, 56) + stage_u(3, 60): b(t)
    stamp(b, True)
    first = True
    for ti, c0 in enumerate(tiles):
        if c0 < 0: continue
        b.barrier()
        rds = yrd(ti, 44) + (yrd(0, 48) if (T == 0 and ti == 1) else [])
        for x in rds: b(x)
        if first: pre_rd(high)
        stamp(b)
        out(ti, 44)
        if T == 0 and ti == 1: out(0, 48)
        if first: pre_m(high)
        first = False
    stamp(b, True)

def tail(b):
    if STAMPS:
        b.wait(vm=0)
        stamp(b, True)
        b.raw('    s_memrealtime s[96:97]\n    s_waitcnt lgkmcnt(0)')
        n = nstamp[0]
        b('s_lshl_b32 s33, s2, 3\ns_add_u32 s33, s33, s28\ns_lshl_b32 s33, s33, 7\nv_mov_b32 v3, s33')
        for i in range(n):
            b('s_sub_u32 s34, s%d, s56' % (60 + 2 * i))
            b('v_mov_b32 v2, s34')
            b('global_store_dword v3, v2, s[58:59] offset:%d' % (4 * i))
        b('v_mov_b32 v2, s98\nglobal_store_dword v3, v2, s[58:59] offset:120\nv_mov_b32 v2, s96\nglobal_store_dword v3, v2, s[58:59] offset:124')
    b('s_endpgm')

base_stamp = nstamp[0]
parts = [b]
p = b.fork()
p.vm = [{('v', vU + 2 * i), ('v', vU + 2 * i + 1)} for i in range(8)]
if PRIO: p('s_setprio %d' % opt('pf1', 1))
p('s_mov_b32 m0, s55')
for t in merge(stage_u(0, 36) + stage_u(1, 40), m1[:7]) + m1[7:]: p(t)
p('ds_write_b64 v%d, v[30:31]' % vPADW)
p('s_mov_b32 m0, s41')
for r in range(64, 84): p('v_mov_b32 v%d, 0' % r)
for i in range(NX): p('v_mul_f32 v%d, v%d, v%d' % (D(i), vMULT, D(i)))
for i in range(NX): p('ds_write_addtid_b32 v%d offset:%d' % (D(i), B2 + i * 256))
p('s_mov_b32 m0, s55')
p('s_cmp_eq_u32 s31, 0')
stamp(p)
p.barrier()
if PRIO: p('s_setprio %d' % opt('pfin', 0))
p('s_cbranch_scc0 L_F1')
parts.append(p)
st2 = nstamp[0]
for T in (0, 1):
    nstamp[0] = st2
    q = p.fork()
    if T == 1: q.raw('L_F1:')
    conv_fin(q, T); tail(q); parts.append(q)
    sys.stderr.write('F T=%d counts %s nops %d\n' % (T, q.count, q.nops))
nstamp[0] = base_stamp
p = b.fork()
p.raw('L_M:')
if PRIO: p('s_setprio %d' % opt('pm', 3))
p('s_mov_b32 m0, s41')
p.raw('    s_waitcnt vmcnt(0)')
BARAT = opt('barat', 4)
for t in m1[:BARAT]: p(t)
p('s_cmp_eq_u32 s31, 0')
p('s_barrier')
for i in range(NX): p('ds_read_addtid_b32 v%d offset:%d' % (192 + i, B2 + i * 256))
for t in m1[BARAT:]: p(t)
p('s_cbranch_scc0 L_M1')
parts.append(p)
st2 = nstamp[0]
nB0 = opt('nb0', 3)
for T in (0, 1):
    nstamp[0] = st2
    q = p.fork()
    if T == 1: q.raw('L_M1:')
    first = [0, 4, 3, 2, 1] if T == 0 else list(range(12, -1, -1))
    if not opt('desc0', 1): first = list(range(13))
    for m in first[:nB0]:
        for t in rdB_lines(m): q(t)
    order = conv_mfma(q, T, nB0); assert order[:nB0] == first[:nB0]
    tail(q); parts.append(q)
    sys.stderr.write('M T=%d counts %s nops %d\n' % (T, q.count, q.nops))
sys.stderr.write('main counts %s nops %d\n' % (b.count, b.nops))

ref = open('standalone__ssm_conv_s4d__prompt.s.ref').read().split('\n')
hdr = [l for l in ref if l.startswith(';') and '@launch' not in l]
out = '\n'.join(hdr) + '\n; @launch grid=(256,1,1) block=(512,1,1) lds=%d\n' % LDS_TOTAL
out += '''.amdgcn_target "amdgcn-amd-amdhsa--gfx950"
.text
.globl %s
.p2align 8
.type %s,@function
''' % (NAME, NAME)
out += ''.join(p.text() for p in parts)
out += 'L_end:\n    s_endpgm\n'
out += '''.section .rodata,"a"
.p2align 6
.amdhsa_kernel %s
  .amdhsa_next_free_vgpr 256
  .amdhsa_next_free_sgpr 102
  .amdhsa_accum_offset 256
  .amdhsa_group_segment_fixed_size 0
  .amdhsa_kernarg_size 80
  .amdhsa_user_sgpr_count 2
  .amdhsa_user_sgpr_kernarg_segment_ptr 1
  .amdhsa_system_sgpr_workgroup_id_x 1
  .amdhsa_float_denorm_mode_32 3
.end_amdhsa_kernel
''' % NAME
out = re.sub(r' ; @[rw]:\w+', '', out)
open(OUT, 'w').write(out)
```

```python
import sys, struct, re
import numpy as np
from asmb import Builder
from sched import schedule

args = sys.argv[1:]
def opt(name, default):
    for a in args:
        if a.startswith('--%s=' % name): return type(default)(a.split('=')[1])
    return default
MINST = '--minst' in args
STAMPS = '--stamps' in args or MINST
OUT = [a for a in args if not a.startswith('--')][0]
NAME = 'standalone__ssm_conv_s4d__prompt_kernel'
PRIO = opt('prio', 1); PF = opt('pf', 3); FPER = opt('fper', 4); CDELAY = opt('cdelay', 2)

def f32(x): return '0x%08x' % struct.unpack('<I', struct.pack('<f', x))[0]
LOG2E = 1.4426950408889634
INV2PI = 0.15915494309189535
I_HI = float(np.float32(INV2PI)); I_LO = INV2PI - I_HI

import random
RSW = 272; WSTR = 5376; B2 = 8 * WSTR
STG_END = 2 * B2
KBASE = STG_END; KCH = 4672
UBASE = KBASE + 4 * KCH; USTR = 4160
LDS_TOTAL = UBASE + 4 * USTR
M0U = 64512
M0K = 40000
YB = 4 * WSTR; YCH = WSTR
PH = [0, 1152, 2368, 3520]; KPADB = 128
def boff(j): return RSW * (j ^ 4 if j < 8 else j)
DROWS = {0: (0, 2), 1: (4, 6), 2: (1, 3), 3: (5, 7), 4: (256, 258), 5: (260, 262), 6: (256, 260), 7: (260, 256),
         8: (512, 768), 9: (516, 772), 10: (1024, 1280), 11: (1536, 1792), 12: (2048, 2048), 13: (2048, 2048), 14: (2048, 2048), 15: (2048, 2048)}
DMAP = {(0, 0): (0, 4), (0, 1): (1, 5), (0, 2): (2, 6), (0, 3): (3, 7), (1, 0): (8, 10), (1, 1): (9, 11), (1, 2): (12, 13), (1, 3): (14, 15)}
AROWS = [[None] * 16, [None] * 16]
for (a_, r_), (dx, dy) in DMAP.items():
    AROWS[a_][0 + r_] = DROWS[dx][0]; AROWS[a_][8 + r_] = DROWS[dx][1]
    AROWS[a_][4 + r_] = DROWS[dy][0]; AROWS[a_][12 + r_] = DROWS[dy][1]
POS = sorted(set(AROWS[0]) | set(AROWS[1])); assert len(POS) == 21
_slots = [RSW * r for r in (16, 17, 18)] + [B2 + RSW * r for r in range(19)]
random.seed(3)
def _ok(m):
    for rows in AROWS:
        seen = {}
        for i, c in enumerate(rows):
            key = ((m[c] // 16) + (8 if 4 <= i < 12 else 0)) % 16
            val = (c, 4 <= i < 12)
            if seen.setdefault(key, val) != val: return False
    return True
while True:
    random.shuffle(_slots)
    AOFF = dict(zip(POS, _slots))
    if _ok(AOFF): break
MOFF = _slots[21]
TILES = {0: [-192, 64, 320, 1536, 1792], 1: [544, 800, 1056, 1312]}
NBLK = lambda c0: -(-(c0 // 4 + 64) // 16)
UCLAMP = 1568

P = lambda r: 'v[%d:%d]' % (r, r + 1)
Q = lambda r: 'v[%d:%d]' % (r, r + 3)
X16 = lambda r: 'v[%d:%d]' % (r, r + 15)
vRAW = 2; vU = 226
vNEGDTL = 14; vJHI = 15; vJLO = 16; vMULT = 18
vKA = 20; vKB = 21; vCA = 22; vCB = 23; vYR = 24; vUS = 25; vUOFF = 26; vOUT = 27; vODD = 28; vOUT2 = 29; vKW0 = 32; vPADW = 0
FB0 = 112; FM = 128; FA0 = 144; FA1 = 160; FB1 = 96; ACC = 176
vKA1 = 19; vKM = 17
class Regs: pass
def mkregs(base32, base16):
    r = Regs()
    (r.z, r.z2, r.z4, r.w1, r.w2, r.w3, r.w4, r.w8, r.w12, r.w16, r.ZZ, r.G0, r.G1, r.T0, r.T1) = [base32 + 2 * i for i in range(15)]
    r.hz, r.hz2, r.hz4 = base16, base16 + 1, base16 + 2
    return r
R0 = mkregs(34, 64); R1 = mkregs(192, 222)
hB = {j: 67 + i for i, j in enumerate((1, 2, 3, 4, 8, 12))}
TMPH = list(range(73, 81))
hA = {c: 81 + i for i, c in enumerate((0, 1, 2, 3, 256, 258, 512, 768))}
for i_, c_ in enumerate([c for c in POS if c not in hA]): hA[c_] = 89 + i_ % 6

def cmul32(d, a, b, conj=False):
    return ['v_pk_mul_f32 %s, %s, %s op_sel:[0,0] op_sel_hi:[1,0]' % (P(d), P(a), P(b)),
            'v_pk_fma_f32 %s, %s, %s, %s op_sel:[1,1,0] op_sel_hi:[0,1,1] %s' % (P(d), P(a), P(b), P(d), 'neg_hi:[1,0,0]' if conj else 'neg_lo:[1,0,0]')]
def cmul16(d, a, b, conj=False):
    return ['v_pk_mul_f16 v%d, v%d, v%d op_sel:[0,0] op_sel_hi:[1,0]' % (d, a, b),
            'v_pk_fma_f16 v%d, v%d, v%d, v%d op_sel:[1,1,0] op_sel_hi:[0,1,1] %s' % (d, a, b, d, 'neg_hi:[1,0,0]' if conj else 'neg_lo:[1,0,0]')]
def cvt16(d, a): return ['v_cvt_pk_f16_f32 v%d, v%d, v%d' % (d, a, a + 1)]
def wrB(j, r): return ['ds_write_addtid_b32 v%d offset:%d ; @w:sB' % (r, boff(j))]
def wrA(c): return ['ds_write_addtid_b32 v%d offset:%d ; @w:sA' % (hA[c], AOFF[c])]

nstamp = [0]
def stamp(b, force=False):
    if not STAMPS or (MINST and not force): return
    i = nstamp[0]; nstamp[0] += 1
    assert 60 + 2 * i + 1 <= 95
    b.raw('    s_memtime s[%d:%d]' % (60 + 2 * i, 61 + 2 * i))
    b.raw('    s_waitcnt lgkmcnt(0)')
    b.lds = []; b.smem = []

def gen_head(rnd):
    r = (R0, R1)[rnd]
    un = (lambda d, s: 'v_lshlrev_b32 v%d, 16, v%d' % (d, s)) if rnd == 0 else (lambda d, s: 'v_and_b32 v%d, 0xffff0000, v%d' % (d, s))
    L = [un(r.T0, vRAW), un(r.T0 + 1, vRAW + 1), un(r.G0, vRAW + 2), un(r.G0 + 1, vRAW + 3)]
    L += ['v_mul_f32 v%d, %s, v%d' % (r.T0, f32(LOG2E), r.T0),
          'v_exp_f32 v%d, v%d' % (r.T0, r.T0),
          'v_cvt_pk_bf16_f32 v%d, 0, v%d' % (r.T0, r.T0),
          'v_mul_f32 v%d, v%d, v%d' % (r.T0, r.T0, vNEGDTL),
          'v_exp_f32 v%d, v%d' % (r.T0, r.T0),
          'v_mul_f32 v%d, v%d, v%d' % (r.T1, r.T0 + 1, vJHI),
          'v_rndne_f32 v%d, v%d' % (r.T1, r.T1),
          'v_fma_f32 v%d, v%d, v%d, -v%d' % (r.T1, r.T0 + 1, vJHI, r.T1),
          'v_fmac_f32 v%d, v%d, v%d' % (r.T1, r.T0 + 1, vJLO),
          'v_cos_f32 v%d, v%d' % (r.z, r.T1),
          'v_sin_f32 v%d, v%d' % (r.z + 1, r.T1),
          'v_pk_mul_f32 %s, %s, %s op_sel:[0,0] op_sel_hi:[1,0]' % (P(r.z), P(r.z), P(r.T0))]
    L += cmul32(r.z2, r.z, r.z) + cmul32(r.z4, r.z2, r.z2) + cmul32(r.w1, r.z4, r.z4) + cmul32(r.w2, r.w1, r.w1) + cmul32(r.w4, r.w2, r.w2)
    L += cmul32(r.w8, r.w4, r.w4) + cmul32(r.w16, r.w8, r.w8) + cmul32(r.ZZ, r.w16, r.w16) + cmul32(r.w3, r.w2, r.w1) + cmul32(r.w12, r.w8, r.w4)
    L += cvt16(r.hz, r.z) + cvt16(r.hz2, r.z2) + cvt16(r.hz4, r.z4)
    L += ['v_pk_mul_f32 %s, %s, s[44:45] op_sel:[0,0] op_sel_hi:[1,0] neg_hi:[0,1]' % (P(r.G0), P(r.G0))]
    return L
def gen_A(rnd):
    r = (R0, R1)[rnd]
    L = cvt16(hA[0], r.G0) + wrA(0)
    for d, a_, b_ in ((1, 0, r.hz), (2, 0, r.hz2), (4, 0, r.hz4), (3, 1, r.hz2), (5, 1, r.hz4), (6, 2, r.hz4), (7, 3, r.hz4)):
        L += cmul16(hA[d], hA[a_], b_, conj=True) + wrA(d)
    g = [r.G0, r.G1]
    for m in range(1, 9):
        L += cmul32(g[m & 1], g[(m - 1) & 1], r.ZZ, conj=True) + cvt16(hA[256 * m], g[m & 1]) + wrA(256 * m)
    for d, a_, b_ in ((258, 256, r.hz2), (260, 256, r.hz4), (262, 258, r.hz4), (516, 512, r.hz4), (772, 768, r.hz4)):
        L += cmul16(hA[d], hA[a_], b_, conj=True) + wrA(d)
    return L
def rd_A():
    L = []
    for s in range(4):
        L += ['ds_read_b128 %s, v%d offset:%d ; @r:sA' % (Q(FA0 + 4 * s), vKA, 16 * s), 'ds_read_b128 %s, v%d offset:%d ; @r:sA' % (Q(FA1 + 4 * s), vKA1, 16 * s)]
    return L
def gen_B(rnd):
    r = (R0, R1)[rnd]
    L = []
    for j, x in ((1, r.w1), (2, r.w2), (3, r.w3), (4, r.w4), (8, r.w8), (12, r.w12)):
        L += cvt16(hB[j], x) + wrB(j, hB[j])
    L += cvt16(TMPH[0], r.w16) + ['ds_write_addtid_b32 v%d offset:%d ; @w:sB' % (TMPH[0], MOFF)]
    n = 1
    for b_ in (4, 8, 12):
        for a_ in (1, 2, 3):
            t = TMPH[n % len(TMPH)]; n += 1
            L += cmul16(t, hB[a_], hB[b_]) + wrB(a_ + b_, t)
    return L
def rd_B():
    L = []
    for s in range(4):
        L += ['ds_read_b128 %s, v%d offset:%d ; @r:sB' % (Q(FB0 + 4 * s), vKB, 16 * s), 'ds_read_b128 %s, v%d offset:%d ; @r:sB' % (Q(FM + 4 * s), vKM, 16 * s)]
    return L
def gen_B1():
    L = []
    for k in range(0, 16, 2):
        a, c = cmul16(FB1 + k, FB0 + k, FM + k), cmul16(FB1 + k + 1, FB0 + k + 1, FM + k + 1)
        L += [a[0], c[0], a[1], c[1]]
    return L
TACC = lambda a, b_: ACC + 8 * a + 4 * b_
def kgen_mfmas(rnd, bsel):
    L = []
    for s in range(4):
        for a in (0, 1):
            L.append('v_mfma_f32_16x16x32_f16 %s, %s, %s, %s' % (Q(TACC(a, bsel)), Q((FA0, FA1)[a] + 4 * s), Q((FB0, FB1)[bsel] + 4 * s), '0' if (rnd == 0 and s == 0) else Q(TACC(a, bsel))))
    return L
def fin_stream(rnd):
    g = gen_B1()
    return g[:16] + merge(g[16:], kgen_mfmas(rnd, 0)) + kgen_mfmas(rnd, 1)
def stage_u(k, t0):
    a, b_ = vU + 4 * k, vU + 4 * k + 2
    L = []
    for c in range(4):
        L += ['v_perm_b32 v%d, v%d, v%d, %s' % (t0 + c, b_ + c // 2, a + c // 2, 's46' if c % 2 == 0 else 's47')]
    for c in range(4):
        off = UBASE + 64 - M0U + c * USTR + 1024 * k; assert off < 65536
        L += ['ds_write_addtid_b32 v%d offset:%d' % (t0 + c, off)]
    return L
def merge(*streams):
    items = []
    for s in streams:
        n = len(s)
        items += [((i + 0.5) / n, x) for i, x in enumerate(s)]
    items.sort(key=lambda t: t[0])
    return [x for _, x in items]

from asmb import Ins
def cluster(L, k):
    out = []; pend = []
    def flush():
        out.extend(pend); pend.clear()
    for t in L:
        if t == 'MID': out.append(t); continue
        x = Ins(t)
        if x.kind in ('dsw', 'dsr'):
            pend.append(t)
            if len(pend) >= k: flush()
            continue
        for q in pend:
            y = Ins(q)
            if set(x.wr) & (set(y.rd) | set(y.wr)) or set(x.rd) & set(y.wr): flush(); break
        out.append(t)
    flush()
    return out

b = Builder()
b.raw(NAME + ':')
if STAMPS: b.raw('    s_memtime s[56:57]\n    s_memrealtime s[98:99]')
b('s_load_dwordx16 s[4:19], s[0:1], 0')
if STAMPS: b('s_load_dwordx2 s[58:59], s[0:1], 72')
b('''
s_and_b32 s33, s2, 7
s_cmp_eq_u32 s33, 7
s_cbranch_scc1 L_end
s_cmp_ge_u32 s2, 256
s_cbranch_scc1 L_end
v_lshrrev_b32 v2, 6, v0
v_and_b32 v1, 63, v0
v_readfirstlane_b32 s28, v2
s_lshr_b32 s34, s2, 3
s_and_b32 s31, s34, 1
s_lshr_b32 s34, s34, 1
s_lshl_b32 s32, s33, 4
s_add_u32 s32, s32, s34
s_and_b32 s29, s28, 3
s_lshr_b32 s30, s28, 2
s_lshl_b32 s33, s32, 2
s_add_u32 s33, s33, s29
s_lshl_b32 s33, s33, 9
s_lshl_b32 s34, s30, 8
s_add_u32 s33, s33, s34
v_lshl_add_u32 v60, v1, 2, s33
s_lshl_b32 s35, s32, 3
v_and_b32 v34, 31, v1
s_mul_i32 s33, s29, %d
s_add_u32 s33, s33, s35
s_movk_i32 s34, 1792
v_mul_u32_u24 v26, s34, v1
v_add_u32 v26, s33, v26
s_lshr_b32 s33, s2, 3
s_lshl_b32 s33, s33, 2
s_add_u32 s33, s33, s29
s_lshl_b32 s33, s33, 4
v_and_b32 v62, 15, v1
v_add_u32 v62, s33, v62
s_movk_i32 s34, 896
v_mul_u32_u24 v62, s34, v62
v_add_u32 v62, s35, v62
s_mov_b32 s48, %d
s_mov_b32 s23, 0x00020000
s_mov_b32 s27, 0x00020000
s_mov_b32 s26, %d
s_cmp_eq_u32 s31, 0
s_cselect_b32 s22, s26, %d
''' % (128 * 896, 512 * 896, 2048 * 896, UCLAMP * 896))
b.wait(lgkm=0)
stamp(b)
b('''
global_load_dword v2, v60, s[6:7]
global_load_dword v3, v60, s[8:9]
s_load_dwordx2 s[36:37], s[14:15], s35
s_load_dwordx2 s[38:39], s[16:17], s35
global_load_dword v4, v60, s[10:11]
global_load_dword v5, v60, s[12:13]
s_mov_b32 s20, s4
s_mov_b32 s21, s5
s_cmp_eq_u32 s30, 0
s_cbranch_scc1 L_nopf
''')
so = ['0', 's48', 's49', 's54']
ul = ['buffer_load_dwordx2 %s, v26, s[20:23], %s offen%s' % (P(vU + 2 * i), so[i // 2], ' offset:896' if i & 1 else '') for i in range(8)]
b.raw('    global_load_dword v254, v62, s[4:5]')
b('L_nopf:\ns_barrier\ns_cbranch_scc0 L_nou')
for x in ul[:4]: b.raw('    ' + x)
b('L_nou:')
enc = lambda o: (o // RSW if o < B2 else 32 + (o - B2) // RSW)
def lut_lines(rows, dst):
    lo = sum(enc(AOFF[rows[i]]) << (8 * i) for i in range(8)); hi = sum(enc(AOFF[rows[8 + i]]) << (8 * i) for i in range(8))
    return """
s_mov_b32 s52, %s
s_mov_b32 s53, %s
v_lshrrev_b64 v[38:39], v37, s[52:53]
s_mov_b32 s52, %s
s_mov_b32 s53, %s
v_lshrrev_b64 v[40:41], v37, s[52:53]
v_bfi_b32 v38, v36, v40, v38
v_and_b32 v39, 31, v38
v_bfe_u32 v38, v38, 5, 1
v_mad_u32_u24 v%d, v39, s33, v42
v_mad_u32_u24 v%d, v38, s34, v%d
""" % (hex(lo & 0xffffffff), hex(lo >> 32), hex(hi & 0xffffffff), hex(hi >> 32), dst, dst, dst)
b("""
s_mul_i32 s40, s28, %d
v_bfe_u32 v41, v1, 4, 1
v_lshrrev_b32 v35, 5, v1
v_lshl_add_u32 v42, v41, 7, s40
v_lshl_add_u32 v42, v35, 6, v42
v_and_b32 v37, 7, v1
v_lshlrev_b32 v37, 3, v37
v_bfe_i32 v36, v1, 3, 1
s_movk_i32 s33, %d
s_mov_b32 s34, %d
""" % (WSTR, RSW, B2))
b(lut_lines(AROWS[0], vKA)); b(lut_lines(AROWS[1], vKA1))
b("""
v_add_u32 v%d, %d, v42
v_and_b32 v38, 15, v1
v_not_b32 v39, v36
v_and_b32 v39, 4, v39
v_xor_b32 v38, v38, v39
v_mad_u32_u24 v%d, v38, s33, v42
v_bfe_u32 v41, v1, 4, 1
""" % (vKM, MOFF, vKB))
b('''
s_mov_b32 s24, s18
s_mov_b32 s25, s19
s_mov_b32 s49, {q2}
s_mov_b32 s54, {q3}
s_mul_i32 s43, s29, {wstr}
s_add_u32 s42, s43, {yb}
s_mul_i32 s41, s29, {kch}
s_add_u32 s3, s41, {m0k}
s_add_u32 s41, s41, {kbase}
s_lshl_b32 s33, s29, 8
s_add_u32 s55, s33, {m0u}
s_mov_b32 s46, 0x05040100
s_mov_b32 s47, 0x07060302
v_and_b32 v43, 3, v1
v_and_b32 v36, 1, v1
v_bfe_u32 v42, v1, 1, 1
s_movk_i32 s33, {ph1}
s_movk_i32 s34, {ph2}
v_mul_u32_u24 v44, s33, v36
v_mad_u32_u24 v44, v42, s34, v44
v_lshrrev_b32 v45, 2, v34
v_add_u32 v45, v45, v35
v_lshl_add_u32 v44, v45, 4, v44
v_add_u32 v22, s41, v44
v_mul_u32_u24 v44, s34, v35
v_lshl_add_u32 v44, v34, 2, v44
v_add_u32 v32, s41, v44
v_mul_u32_u24 v44, s33, v41
v_mad_u32_u24 v44, v35, s34, v44
v_and_b32 v45, 15, v1
v_lshl_add_u32 v44, v45, 3, v44
v_add_u32 v0, s41, v44
v_bfe_u32 v42, v1, 2, 2
s_mul_i32 s34, s29, {ustr}
s_add_u32 s33, s34, {ub96}
v_lshlrev_b32 v44, 5, v41
v_lshl_add_u32 v44, v43, 3, v44
v_add_u32 v44, s33, v44
v_lshlrev_b32 v46, 6, v35
v_lshl_add_u32 v46, v42, 3, v46
v_sub_u32 v23, v44, v46
s_add_u32 s34, s34, {ubase}
v_lshl_add_u32 v45, v45, 2, s34
v_mov_b32 v30, 0
v_mov_b32 v31, 0
ds_write_b32 v45, v30
ds_write_b64 v0, v[30:31]
v_mov_b32 v44, 0x3c00
v_lshlrev_b32 v45, 2, v1
s_mov_b32 m0, s40
ds_write_addtid_b32 v44 offset:{c0row}
v_bfe_i32 v28, v1, 0, 1
s_lshl_b32 s33, s29, 8
s_add_u32 s33, s33, {yb}
v_add_u32 v24, s33, v45
s_lshl_b32 s33, s29, 6
v_add_u32 v45, s33, v1
v_lshlrev_b32 v46, 1, v45
v_add_u32 v25, {usb}, v46
s_movk_i32 s34, 896
v_mul_u32_u24 v46, s34, v45
v_add_u32 v27, s35, v46
v_subrev_u32 v46, 32, v45
v_and_b32 v46, 0x40000000, v46
v_add_u32 v29, v27, v46
s_mov_b32 m0, s40
'''.format(q2=1024 * 896, q3=1536 * 896, wstr=WSTR, yb=YB, ych=YCH, m0u=M0U, rsw=RSW, kch=KCH, m0k=M0K, kbase=KBASE, c0row=boff(0),
           ph1=PH[1], ph2=PH[2], ustr=USTR, ub96=UBASE + 96, ubase=UBASE, usb=UBASE + 64 - 384))
b.wait(lgkm=0)
stamp(b)
b('''
s_lshl_b32 s33, s29, 4
s_lshr_b64 s[36:37], s[36:37], s33
s_lshl_b32 s36, s36, 16
v_mov_b32 v46, {log2e}
v_mul_f32 v18, s36, v46
v_exp_f32 v18, v18
s_lshl_b32 s50, s38, 16
s_and_b32 s51, s38, 0xffff0000
s_lshl_b32 s52, s39, 16
s_and_b32 s53, s39, 0xffff0000
v_cvt_pk_bf16_f32 v18, 0, v18
v_mul_f32 v14, {nlog2e}, v18
v_mul_f32 v15, {ihi}, v18
v_mov_b32 v45, {ihi}
v_fma_f32 v16, v18, v45, -v15
v_mov_b32 v45, {ilo}
v_fmac_f32 v16, v18, v45
v_add_f32 v18, v18, v18
'''.format(log2e=f32(LOG2E), nlog2e=f32(-LOG2E), ihi=f32(I_HI), ilo=f32(I_LO)))
b.raw('    s_waitcnt vmcnt(4)')
b('s_cmp_eq_u32 s30, 0\ns_cbranch_scc1 L_w7')
b.raw('    s_waitcnt vmcnt(1)')
b('L_w7:')
b.vm = []
stamp(b)
if PRIO: b('s_setprio 3')
scale = '''
v_and_b32 v176, 0x7fff7fff, v4
v_and_b32 v177, 0x7fff7fff, v5
v_pk_max_u16 v176, v176, v177
v_lshlrev_b32 v177, 16, v176
v_max_u32 v176, v176, v177
v_max_u32_dpp v176, v176, v176 row_shr:1 row_mask:0xf bank_mask:0xf
v_max_u32_dpp v176, v176, v176 row_shr:2 row_mask:0xf bank_mask:0xf
v_max_u32_dpp v176, v176, v176 row_shr:4 row_mask:0xf bank_mask:0xf
v_max_u32_dpp v176, v176, v176 row_shr:8 row_mask:0xf bank_mask:0xf
v_max_u32_dpp v176, v176, v176 row_bcast:15 row_mask:0xa bank_mask:0xf
v_max_u32_dpp v176, v176, v176 row_bcast:31 row_mask:0xc bank_mask:0xf
v_readlane_b32 s33, v176, 63
s_lshr_b32 s33, s33, 23
s_sub_u32 s33, 267, s33
s_min_u32 s33, s33, 253
s_lshl_b32 s44, s33, 23
s_sub_u32 s33, 254, s33
s_lshl_b32 s45, s33, 23
v_mul_f32 v18, s45, v18
'''.strip().split('\n')
gA0 = gen_A(0); nnear = 2 + 7 * 3
ph1 = schedule(scale + gen_head(0) + gen_B(0) + gA0[:nnear])
ph2 = merge(schedule(gA0[nnear:]), rd_B(), schedule(gen_head(1)))
ph3 = rd_A() + merge(schedule(gen_B(1)), fin_stream(0))
ph4 = merge(schedule(gen_A(1)), rd_B())
if opt('rdfirst', 1):
    ph2 = rd_B() + merge(schedule(gA0[nnear:]), schedule(gen_head(1)))
    ph4 = rd_B() + schedule(gen_A(1))
allk = ph1 + ph2 + ['MID'] + ph3 + ph4
if opt('cl', 4) > 1: allk = cluster(allk, opt('cl', 4))
if '--loopk' in args:
    b.raw('    s_waitcnt vmcnt(0)')
    b('s_setprio 0\ns_barrier')
    stamp(b, True)
    b('s_mov_b32 s96, 10')
    if '--solo' in args: b('s_cmp_eq_u32 s30, 0\ns_cbranch_scc0 L_loopx')
    b.raw('L_loopk:')
    blk = [x for x in allk if x != 'MID'] + rd_A() + fin_stream(1)
    if '--nomfma' in args: blk = [x for x in blk if 'mfma' not in x]
    if '--nowr' in args: blk = [x for x in blk if 'ds_write' not in x]
    if '--nord' in args: blk = [x for x in blk if 'ds_read' not in x]
    if '--novalu' in args: blk = [x for x in blk if not x.startswith('v_') or 'mfma' in x]
    if '--nopk32' in args: blk = [x for x in blk if not ('v_pk_' in x and 'f32' in x)]
    for t in blk: b(t)
    b.wait(lgkm=0)
    b('s_nop 7\ns_nop 7\ns_sub_u32 s96, s96, 1\ns_cmp_lg_u32 s96, 0\ns_cbranch_scc1 L_loopk\nL_loopx:')
    stamp(b, True)
    b('s_barrier')
    stamp(b, True)
PP = [int(len(allk) * float(x)) for x in opt('pp', '0.25,0.5,0.75').split(',')]
UP = [int(len(allk) * float(x)) for x in opt('up', '0.17,0.34,0.51,0.68').split(',')]
for i, t in enumerate(allk):
    for k, pt in enumerate(UP):
        if i == pt:
            b('s_cmp_eq_u32 s30, 0\ns_cbranch_scc0 L_nu%d' % k)
            b.raw('    ' + ul[4 + k])
            b('L_nu%d:' % k)
    for k, pt in enumerate(PP):
        if i == pt and PRIO: b('s_setprio %d' % (2 - k))
    if t == 'MID': stamp(b)
    else: b(t)
stamp(b)
for t in rd_A(): b(t)
m1 = fin_stream(1)
NSH = opt('nsh', 16)
for t in m1[:NSH]: b(t)
m1 = m1[NSH:]
b('s_cmp_eq_u32 s30, 0')
b('s_cbranch_scc0 L_M')

DPHYS = {}
for (a_, r_), (dx, dy) in DMAP.items(): DPHYS[dx] = TACC(a_, 0) + r_; DPHYS[dy] = TACC(a_, 1) + r_
D = lambda i: DPHYS[i]
NX = 13
PARTNER = {}
for (dx, dy) in DMAP.values(): PARTNER[dx] = dy; PARTNER[dy] = dx
BF = lambda m: (112 + 4 * m) if m < 16 else (176 + 4 * (m - 16))
def rdB_lines(m): return ['ds_read_b64_tr_b16 %s, v%d offset:%d' % (P(BF(m)), vCB, 128 * m + 32), 'ds_read_b64_tr_b16 %s, v%d offset:%d' % (P(BF(m) + 2), vCB, 128 * m)]

def kfin_parts():
    dp = 'bank_mask:0xf'
    cv = lambda d, x, y: 'v_cvt_pk_bf16_f32 v%d, v%d, v%d' % (d, x, y)
    fm = lambda i: 'v_fma_f32 v%d, v%d, v%d, v%d' % (D(i), D(i), vMULT, 192 + i)
    wr = lambda r, ph, off: 'ds_write_addtid_b32 v%d offset:%d' % (r, KBASE - M0K + KPADB + PH[ph] + off)
    nx = lambda s_, cur, nxt: ['v_mov_b32_dpp v%d, v%d wave_rol:1 row_mask:0xf %s' % (s_, D(nxt), dp),
                               'v_mov_b32_dpp v%d, v%d wave_shl:1 row_mask:0xf %s' % (s_, D(cur), dp)]
    sw = lambda x: 'v_permlane16_swap_b32 v%d, v%d' % (D(x), D(PARTNER[x]))
    p0 = [fm(0), fm(4), fm(1), fm(5), fm(2), fm(6), sw(0), fm(3), fm(7), sw(1), fm(8), sw(2), fm(10), sw(3), cv(206, D(0), D(1)), cv(207, D(2), D(3)),
          'ds_write_b32 v%d, v206 offset:%d' % (vKW0, KPADB), 'ds_write_b32 v%d, v207 offset:%d' % (vKW0, KPADB + PH[1])]
    p1 = [sw(8), 'v_mov_b32 v210, v%d' % D(7), cv(208, D(4), D(5)),
          'ds_write_b32 v%d, v208 offset:%d' % (vKW0, KPADB + 128), fm(9),
          'v_mov_b32_dpp v210, v%d wave_rol:1 row_mask:0x8 %s' % (D(8), dp), fm(11), fm(12),
          'v_mov_b32_dpp v210, v%d wave_shl:1 row_mask:0xc %s' % (D(7), dp), sw(9),
          cv(209, D(6), 210), 'ds_write_b32 v%d, v209 offset:%d' % (vKW0, KPADB + 128 + PH[1])]
    n8 = nx(211, 8, 10)
    p2 = [n8[0], cv(212, D(8), D(9)), n8[1], wr(212, 0, 256), wr(212, 1, 256), cv(213, D(8), 211), cv(214, D(9), 211), wr(213, 2, 256), wr(214, 3, 256)]
    parts = [(256, p0), (512, p1), (1024, p2)]
    for (r, cur, nxt, off, lim) in ((215, 10, 11, 512, 1536), (219, 11, 12, 768, 2048)):
        n = nx(r, cur, nxt)
        L = [n[0], 's_nop 0', n[1], 's_nop 0', cv(r + 2, D(cur), r), 'v_bfi_b32 v%d, v%d, v%d, v%d' % (r + 1, vODD, r, D(cur)),
             wr(r + 2, 1, off), cv(r + 3, D(cur), r + 1), wr(r + 2, 2, off), wr(r + 2, 3, off), wr(r + 3, 0, off)]
        parts.append((lim, [x for x in L if x != 's_nop 0']))
    return parts

def conv_mfma(b, T, nB0):
    tiles = TILES[T]
    seq = []
    for ti, c0 in enumerate(tiles):
        ms = list(range(NBLK(c0)))
        if ti == 0 and T == 1 and opt('desc0', 1): ms = ms[::-1]
        if ti == 1 and T == 0 and opt('desc0', 1): ms = ms[::-1]
        seq += [(ti, c0, m) for m in ms]
    last = {}
    for idx, (ti, c0, m) in enumerate(seq): last[ti] = idx
    NB = 4
    ABUF = [240 + 4 * i for i in range(NB)]
    acc = lambda ti: 64 + 16 * (ti % 3)
    dp = 'row_mask:0xf bank_mask:0xf'
    A2 = lambda par, g: 36 + 8 * par + g
    A1 = lambda par, g: 40 + 8 * par + g
    def combine(ti, prev, groups):
        a = acc(ti); par = ti & 1
        L = []
        lv = [(lambda g: a + 4 * g + 3, lambda g: a + 4 * g + 2, lambda g: A2(par, g)),
              (lambda g: A2(par, g), lambda g: a + 4 * g + 1, lambda g: A1(par, g)),
              (lambda g: A1(par, g), lambda g: a + 4 * g, lambda g: 52 + g)]
        for li, (src, add, dst) in enumerate(lv):
            firsts = []; seconds = []
            for g in groups:
                p = src(g - 1) if g > groups[0] else (prev[li] if prev else None)
                if p is not None:
                    firsts.append('v_add_f32_dpp v%d, v%d, v%d wave_ror:1 %s' % (dst(g), p, add(g), dp))
                    seconds.append('v_add_f32_dpp v%d, v%d, v%d wave_shr:1 %s' % (dst(g), src(g), add(g), dp))
                else:
                    seconds.append('v_add_f32_dpp v%d, v%d, v%d wave_shr:1 %s bound_ctrl:0' % (dst(g), src(g), add(g), dp))
            L += firsts + seconds
        L.append('M0Y')
        for g in groups: L.append('ds_write_addtid_b32 v%d offset:%d' % (52 + g, ti * 1024 + g * 256))
        return L + (['MARK'] + ['GAP'] * opt('bgap', 2) + ['BAR'] if len(groups) > 1 else []), (a + 15, A2(par, 3), A1(par, 3))
    fq = []
    prev = None
    for ti, c0 in enumerate(tiles):
        if c0 in (544, 1536): prev = None
        L, prev = combine(ti, prev, (3,) if c0 < 0 else (0, 1, 2, 3))
        fq += [(last[ti] + CDELAY, x) for x in L]
    kq = [(lim, x) for lim, L in kfin_parts() for x in L]
    order = []
    for _, _, m in seq:
        if m not in order: order.append(m)
    loaded = set(order[:nB0])
    bq = [(m, x) for m in order[nB0:] for x in rdB_lines(m)]
    st = {'bars': 0, 'm0': 'x'}
    S2BAR = 1
    def setm0(w):
        if st['m0'] != w:
            b('s_mov_b32 m0, %s' % ('s3' if w == 'k' else 's42')); st['m0'] = w
    def emit_k():
        x = kq.pop(0)[1]
        if 'addtid' in x: setm0('k')
        b(x)
    def emit_f(x):
        if x == 'GAP' or x == 'M0Y': return
        if x == 'MARK':
            b.lds[-1] = b.lds[-1] | {('x', 'ymark')}; return
        if x == 'BAR':
            n = b._need(b.lds, {('x', 'ymark')})
            if n is not None: b.wait(lgkm=n)
            b('s_barrier'); st['bars'] += 1; return
        if 'addtid' in x: setm0('y')
        b(x)
    def emit_b():
        m, x = bq.pop(0)
        if m >= 16:
            while kq: emit_k()
        b(x)
        if not bq or bq[0][0] != m: loaded.add(m)
    def issue_reads(i):
        ti, c0, m = seq[i]
        if m >= 16:
            while st['bars'] < S2BAR: emit_f(fq.pop(0)[1])
        while m not in loaded: emit_b()
        maxtap = c0 - 64 * m - 32 + 224 + 63
        lims = [0, 256, 512, 1024, 1536, 2048]
        while kq and lims[lims.index(kq[0][0]) - 1] <= maxtap: emit_k()
        off = KPADB + (c0 - 64 * m - 32) // 2
        assert off >= 0 and off % 16 == 0
        b('ds_read_b128 %s, v%d offset:%d' % (Q(ABUF[i % NB]), vCA, off))
    for i in range(PF): issue_reads(i)
    stamp(b, True)
    started = set()
    for i, (ti, c0, m) in enumerate(seq):
        a = acc(ti)
        b('v_mfma_f32_32x32x16_bf16 %s, %s, %s, %s' % (X16(a), Q(ABUF[i % NB]), Q(BF(m)), X16(a) if ti in started else '0'))
        started.add(ti)
        nb = len(bq) + len(kq)
        if i + PF < len(seq): issue_reads(i + PF)
        n = nb - len(bq) - len(kq)
        while fq and fq[0][0] <= i and n < (opt('fper0', 6) if st['bars'] < 1 else FPER):
            x = fq.pop(0)[1]; emit_f(x); n += 1
            if x == 'GAP': break
        while kq and n < FPER: emit_k(); n += 1
        if n == 0:
            for _ in range(opt('bper', 1)):
                if bq and (bq[0][0] < 16 or st['bars'] >= S2BAR): emit_b()
    stamp(b, True)
    while fq: emit_f(fq.pop(0)[1])
    return order

def conv_fin(b, T):
    tiles = TILES[T]
    def pre_rd(tis):
        for ti in tis:
            for c in range(4): b('ds_read_u16_d16_hi v%d, v%d offset:%d' % (64 + 4 * ti + c, vUS, 2 * (tiles[ti] + 192) + c * USTR))
    def pre_m(tis):
        for ti in tis:
            r = 64 + 4 * ti
            for c in range(4): b('v_mul_f32 v%d, s%d, v%d' % (r + c, 50 + c, r + c))
            for c in range(4): b('v_cvt_pk_bf16_f32 v%d, 0, v%d' % (r + c, r + c))
    def yrd(ti, r): return ['ds_read2st64_b32 v[%d:%d], v%d offset0:%d offset1:%d' % (r, r + 1, vYR, ti * 4, ti * 4 + 21),
                            'ds_read2st64_b32 v[%d:%d], v%d offset0:%d offset1:%d' % (r + 2, r + 3, vYR, ti * 4 + 42, ti * 4 + 63)]
    def out(ti, y):
        c0 = tiles[ti]; r = 64 + 4 * ti
        if c0 >= 0:
            b('s_mov_b32 s33, %d' % (c0 * 896)); vo, so_ = (vOUT2 if c0 in (544, 1536) else vOUT), 's33'
        else: vo, so_ = 42, '0'
        for c in range(4): b('v_cvt_pk_bf16_f32 v%d, 0, v%d' % (y + c, y + c))
        for c in range(4): b('v_add_f32 v%d, v%d, v%d' % (y + c, y + c, r + c))
        b('v_cvt_pk_bf16_f32 v%d, v%d, v%d\nv_cvt_pk_bf16_f32 v%d, v%d, v%d' % (r, y, y + 1, r + 1, y + 2, y + 3))
        b('buffer_store_dwordx2 v[%d:%d], v%d, s[24:27], %s offen' % (r, r + 1, vo, so_))
    low = [ti for ti, c0 in enumerate(tiles) if c0 + 256 <= 1024]
    high = [ti for ti in range(len(tiles)) if ti not in low]
    pre_rd(low)
    if T == 0: b('v_add_u32 v42, %s, v%d' % (hex((-192 * 896) & 0xffffffff), vOUT))
    pre_m(low)
    stamp(b)
    for t in stage_u(2, 56) + stage_u(3, 60): b(t)
    stamp(b, True)
    first = True
    for ti, c0 in enumerate(tiles):
        if c0 < 0: continue
        b.barrier()
        rds = yrd(ti, 44) + (yrd(0, 48) if (T == 0 and ti == 1) else [])
        for x in rds: b(x)
        if first: pre_rd(high)
        stamp(b)
        out(ti, 44)
        if T == 0 and ti == 1: out(0, 48)
        if first: pre_m(high)
        first = False
    stamp(b, True)

def tail(b):
    if STAMPS:
        b.wait(vm=0)
        stamp(b, True)
        b.raw('    s_memrealtime s[96:97]\n    s_waitcnt lgkmcnt(0)')
        n = nstamp[0]
        b('s_lshl_b32 s33, s2, 3\ns_add_u32 s33, s33, s28\ns_lshl_b32 s33, s33, 7\nv_mov_b32 v3, s33')
        for i in range(n):
            b('s_sub_u32 s34, s%d, s56' % (60 + 2 * i))
            b('v_mov_b32 v2, s34')
            b('global_store_dword v3, v2, s[58:59] offset:%d' % (4 * i))
        b('v_mov_b32 v2, s98\nglobal_store_dword v3, v2, s[58:59] offset:120\nv_mov_b32 v2, s96\nglobal_store_dword v3, v2, s[58:59] offset:124')
    b('s_endpgm')

base_stamp = nstamp[0]
parts = [b]
p = b.fork()
p.vm = [{('v', vU + 2 * i), ('v', vU + 2 * i + 1)} for i in range(8)]
if PRIO: p('s_setprio %d' % opt('pf1', 1))
p('s_mov_b32 m0, s55')
for t in merge(stage_u(0, 36) + stage_u(1, 40), m1): p(t)
p('s_mov_b32 m0, s43')
for r in range(64, 84): p('v_mov_b32 v%d, 0' % r)
for i in range(NX): p('v_mul_f32 v%d, v%d, v%d' % (D(i), vMULT, D(i)))
for i in range(NX): p('ds_write_addtid_b32 v%d offset:%d' % (D(i), B2 + i * 256))
p('s_mov_b32 m0, s55')
p('s_cmp_eq_u32 s31, 0')
stamp(p)
p.barrier()
if PRIO: p('s_setprio %d' % opt('pfin', 0))
p('s_cbranch_scc0 L_F1')
parts.append(p)
st2 = nstamp[0]
for T in (0, 1):
    nstamp[0] = st2
    q = p.fork()
    if T == 1: q.raw('L_F1:')
    conv_fin(q, T); tail(q); parts.append(q)
    sys.stderr.write('F T=%d counts %s nops %d\n' % (T, q.count, q.nops))
nstamp[0] = base_stamp
p = b.fork()
p.raw('L_M:')
if PRIO: p('s_setprio %d' % opt('pm', 3))
p('s_mov_b32 m0, s43')
p.raw('    s_waitcnt vmcnt(0)')
BARAT = opt('barat', 16)
for t in m1[:BARAT]: p(t)
p('s_cmp_eq_u32 s31, 0')
p('s_barrier')
for i in range(NX): p('ds_read_addtid_b32 v%d offset:%d' % (192 + i, B2 + i * 256))
for t in m1[BARAT:]: p(t)
p('s_cbranch_scc0 L_M1')
parts.append(p)
st2 = nstamp[0]
nB0 = opt('nb0', 3)
for T in (0, 1):
    nstamp[0] = st2
    q = p.fork()
    if T == 1: q.raw('L_M1:')
    first = [0, 4, 3, 2, 1] if T == 0 else list(range(12, -1, -1))
    if not opt('desc0', 1): first = list(range(13))
    for m in first[:nB0]:
        for t in rdB_lines(m): q(t)
    order = conv_mfma(q, T, nB0); assert order[:nB0] == first[:nB0]
    tail(q); parts.append(q)
    sys.stderr.write('M T=%d counts %s nops %d\n' % (T, q.count, q.nops))
sys.stderr.write('main counts %s nops %d\n' % (b.count, b.nops))

ref = open('standalone__ssm_conv_s4d__prompt.s.ref').read().split('\n')
hdr = [l for l in ref if l.startswith(';') and '@launch' not in l]
out = '\n'.join(hdr) + '\n; @launch grid=(256,1,1) block=(512,1,1) lds=%d\n' % LDS_TOTAL
out += '''.amdgcn_target "amdgcn-amd-amdhsa--gfx950"
.text
.globl %s
.p2align 8
.type %s,@function
''' % (NAME, NAME)
out += ''.join(p.text() for p in parts)
out += 'L_end:\n    s_endpgm\n'
out += '''.section .rodata,"a"
.p2align 6
.amdhsa_kernel %s
  .amdhsa_next_free_vgpr 256
  .amdhsa_next_free_sgpr 102
  .amdhsa_accum_offset 256
  .amdhsa_group_segment_fixed_size 0
  .amdhsa_kernarg_size 80
  .amdhsa_user_sgpr_count 2
  .amdhsa_user_sgpr_kernarg_segment_ptr 1
  .amdhsa_system_sgpr_workgroup_id_x 1
  .amdhsa_float_denorm_mode_32 3
.end_amdhsa_kernel
''' % NAME
out = re.sub(r' ; @[rw]:\w+', '', out)
open(OUT, 'w').write(out)
```

```python
import re
from asmb import Ins

def mem_tags(text):
    w = re.findall(r'@w:(\w+)', text); r = re.findall(r'@r:(\w+)', text)
    return set(r), set(w)

def schedule(lines, lat_valu=2, lat_trans=3, lat_dsr=24, lat_mfma=18, mfma_gap=6, lat_vld=0):
    n = len(lines)
    ins = [Ins(t) for t in lines]
    tags = [mem_tags(t) for t in lines]
    preds = [dict() for _ in range(n)]
    lastw = {}; readers = {}
    mw = {}; mr = {}
    def lat(p):
        k = ins[p].kind
        return {'valu': lat_valu, 'trans': lat_trans, 'dsr': lat_dsr, 'mfma': lat_mfma, 'salu': 2, 'vld': lat_vld}.get(k, 1)
    for i, x in enumerate(ins):
        def dep(p, l):
            if p != i: preds[i][p] = max(preds[i].get(p, 0), l)
        for r in x.rd:
            if r in lastw:
                p = lastw[r]
                l = lat(p)
                if ins[p].kind == 'mfma' and x.kind == 'mfma' and r in x.srcc: l = 1
                if x.dpp or x.kind == 'mfma': l = max(l, 3) if ins[p].kind != 'mfma' else l
                dep(p, l)
        for r in x.wr:
            if r in lastw: dep(lastw[r], 1)
            for p in readers.get(r, []): dep(p, 1)
        for r in x.rd: readers.setdefault(r, []).append(i)
        for r in x.wr: lastw[r] = i; readers[r] = []
        tr, tw = tags[i]
        for t in tr:
            for p in mw.get(t, []): dep(p, 1)
        for t in tw:
            for p in mr.get(t, []): dep(p, 1)
        for t in tr: mr.setdefault(t, []).append(i)
        for t in tw: mw.setdefault(t, []).append(i)
    succ = [[] for _ in range(n)]
    for i in range(n):
        for p, l in preds[i].items(): succ[p].append((i, l))
    prio = [0] * n
    for i in reversed(range(n)):
        prio[i] = max([l + prio[s] for s, l in succ[i]], default=0)
    done = [None] * n
    order = []; t = 0; last_mfma = -100
    remaining = set(range(n))
    while remaining:
        cands = []
        for i in remaining:
            if all(done[p] is not None for p in preds[i]):
                est = max([done[p] + l for p, l in preds[i].items()], default=0)
                if ins[i].kind == 'mfma': est = max(est, last_mfma + mfma_gap)
                cands.append((est, i))
        ready = [i for est, i in cands if est <= t]
        if ready:
            i = max(ready, key=lambda k: (prio[k], -k))
        else:
            est, i = min(cands, key=lambda c: (c[0], -prio[c[1]]))
            t = est
        done[i] = t
        if ins[i].kind == 'mfma': last_mfma = t
        t += 2 if ins[i].kind == 'trans' else 1
        order.append(i); remaining.discard(i)
    return [lines[i] for i in order]


def schedule2(lines, pace=3, lat_valu=2, lat_trans=3, lat_dsr=20, lat_mfma=6, lowq=2, mfma_gap=3):
    n = len(lines)
    ins = [Ins(t) for t in lines]
    tags = [mem_tags(t) for t in lines]
    preds = [dict() for _ in range(n)]
    lastw = {}; readers = {}; mw = {}; mr = {}
    def lat(p):
        return {'valu': lat_valu, 'trans': lat_trans, 'dsr': lat_dsr, 'mfma': lat_mfma, 'salu': 2}.get(ins[p].kind, 1)
    for i, x in enumerate(ins):
        def dep(p, l):
            if p != i: preds[i][p] = max(preds[i].get(p, 0), l)
        for r in x.rd:
            if r in lastw:
                p = lastw[r]; l = lat(p)
                if ins[p].kind == 'mfma' and x.kind == 'mfma' and r in x.srcc: l = 1
                if (x.dpp or x.kind == 'mfma') and ins[p].kind != 'mfma': l = max(l, 3)
                dep(p, l)
        for r in x.wr:
            if r in lastw: dep(lastw[r], 1)
            for p in readers.get(r, []): dep(p, 1)
        for r in x.rd: readers.setdefault(r, []).append(i)
        for r in x.wr: lastw[r] = i; readers[r] = []
        tr, tw = tags[i]
        for t in tr:
            for p in mw.get(t, []): dep(p, 1)
        for t in tw:
            for p in mr.get(t, []): dep(p, 1)
        for t in tr: mr.setdefault(t, []).append(i)
        for t in tw: mw.setdefault(t, []).append(i)
    succ = [[] for _ in range(n)]
    for i in range(n):
        for p, l in preds[i].items(): succ[p].append((i, l))
    isl = [x.kind in ('dsr', 'dsw') for x in ins]
    prio = [0] * n
    for i in reversed(range(n)):
        w = pace + 1 if isl[i] else 0
        prio[i] = max([max(l, w) + prio[s] for s, l in succ[i]], default=0)
    dist = [99] * n
    for i in reversed(range(n)):
        if isl[i]: dist[i] = 0
        else:
            for s, l in succ[i]:
                if set(ins[i].wr) & set(ins[s].rd): dist[i] = min(dist[i], dist[s] + 1)
    done = [None] * n; order = []; t = 0; since = pace; last_m = -99
    remaining = set(range(n))
    while remaining:
        av = []
        for i in remaining:
            if all(done[p] is not None for p in preds[i]):
                est = max([done[p] + l for p, l in preds[i].items()], default=0)
                if ins[i].kind == 'mfma': est = max(est, last_m + mfma_gap)
                av.append((est, i))
        rl = [i for e, i in av if e <= t and isl[i]]
        rv = [i for e, i in av if e <= t and not isl[i]]
        nq = len([i for e, i in av if isl[i]])
        if rl and (since >= pace or not rv):
            i = max(rl, key=lambda k: (prio[k], -k)); since = 0
        elif rv:
            if nq < lowq: i = min(rv, key=lambda k: (dist[k], -prio[k], k))
            elif nq > lowq + 2: i = max(rv, key=lambda k: (min(dist[k], 4), prio[k], -k))
            else: i = max(rv, key=lambda k: (prio[k], -k))
            k = ins[i].kind
            since += 2 if k in ('trans', 'mfma') else (0 if k == 'salu' else 1)
        else:
            e, i = min(av, key=lambda c: (c[0], -prio[c[1]])); t = e
            if isl[i]: since = 0
            else: since += 1
        done[i] = t
        if ins[i].kind == 'mfma': last_m = t
        t += 2 if ins[i].kind in ('trans', 'mfma') else 1
        order.append(i); remaining.discard(i)
    return [lines[i] for i in order]
```

```python
import sys, struct, re
import numpy as np
from asmb import Builder
from sched import schedule, schedule2

args = sys.argv[1:]
def opt(name, default):
    for a in args:
        if a.startswith('--%s=' % name): return type(default)(a.split('=')[1])
    return default
MINST = '--minst' in args
STAMPS = '--stamps' in args or MINST
OUT = [a for a in args if not a.startswith('--')][0]
NAME = 'standalone__ssm_conv_s4d__prompt_kernel'
PRIO = opt('prio', 1); PF = opt('pf', 3); FPER = opt('fper', 4); CDELAY = opt('cdelay', 2)

def f32(x): return '0x%08x' % struct.unpack('<I', struct.pack('<f', x))[0]
LOG2E = 1.4426950408889634
INV2PI = 0.15915494309189535
I_HI = float(np.float32(INV2PI)); I_LO = INV2PI - I_HI

import random
RSW = 272; WSTR = 5376; B2 = 8 * WSTR
STG_END = 2 * B2
KBASE = STG_END; KCH = 4672
UBASE = KBASE + 4 * KCH; USTR = 4160
LDS_TOTAL = UBASE + 4 * USTR
M0U = 64512
M0K = 40000
YB = 4 * WSTR; YCH = WSTR
PH = [0, 1152, 2368, 3520]; KPADB = 128
def boff(j): return RSW * (j ^ 4 if j < 8 else j)
DROWS = {0: (0, 2), 1: (4, 6), 2: (1, 3), 3: (5, 7), 4: (256, 258), 5: (260, 262), 6: (256, 260), 7: (260, 256),
         8: (512, 768), 9: (516, 772), 10: (1024, 1280), 11: (1536, 1792), 12: (2048, 2048), 13: (2048, 2048), 14: (2048, 2048), 15: (2048, 2048)}
DMAP = {(0, 0): (0, 2), (0, 1): (1, 3), (0, 2): (4, 6), (0, 3): (5, 7), (1, 0): (8, 10), (1, 1): (9, 11), (1, 2): (12, 13), (1, 3): (14, 15)}
AROWS = [[None] * 16, [None] * 16]
for (a_, r_), (dx, dy) in DMAP.items():
    AROWS[a_][0 + r_] = DROWS[dx][0]; AROWS[a_][8 + r_] = DROWS[dx][1]
    AROWS[a_][4 + r_] = DROWS[dy][0]; AROWS[a_][12 + r_] = DROWS[dy][1]
POS = sorted(set(AROWS[0]) | set(AROWS[1])); assert len(POS) == 21
_slots = [RSW * r for r in (16, 17, 18)] + [B2 + RSW * r for r in range(19)]
random.seed(3)
def _ok(m):
    for rows in AROWS:
        seen = {}
        for i, c in enumerate(rows):
            key = ((m[c] // 16) + (8 if 4 <= i < 12 else 0)) % 16
            val = (c, 4 <= i < 12)
            if seen.setdefault(key, val) != val: return False
    return True
while True:
    random.shuffle(_slots)
    AOFF = dict(zip(POS, _slots))
    if _ok(AOFF): break
MOFF = _slots[21]
TILES = {0: [-192, 64, 320, 1536, 1792], 1: [544, 800, 1056, 1312]}
NBLK = lambda c0: -(-(c0 // 4 + 64) // 16)
UCLAMP = 1568

P = lambda r: 'v[%d:%d]' % (r, r + 1)
Q = lambda r: 'v[%d:%d]' % (r, r + 3)
X16 = lambda r: 'v[%d:%d]' % (r, r + 15)
vRAW = 2; vU = 226
vNEGDTL = 14; vJHI = 15; vJLO = 16; vMULT = 18
vKA = 20; vKB = 22; vCA = 24; vKW0 = 25; vCB = 26; vODD = 27; vUOFF = 28; vYR = 29; vUS = 30; vOUT = 31; vOUT2 = 32
FB0 = 112; FM = 128; FA0 = 144; FA1 = 160; FB1 = 96; ACC = 176
vKA1 = 21; vKM = 23
class Regs: pass
def mkregs(base32, base16):
    r = Regs()
    (r.z, r.z2, r.z4, r.w1, r.w2, r.w3, r.w4, r.w8, r.w12, r.w16, r.ZZ, r.G0, r.G1, r.T0, r.T1) = [base32 + 2 * i for i in range(15)]
    r.hz, r.hz2, r.hz4 = base16, base16 + 1, base16 + 2
    return r
R0 = mkregs(34, 64); R1 = mkregs(192, 222)
hB = {j: 67 + i for i, j in enumerate((1, 2, 3, 4, 8, 12))}
TMPH = list(range(73, 81)) + [6, 7]
hA = {c: 81 + i for i, c in enumerate((0, 1, 2, 3, 256, 258, 512, 768))}
for i_, c_ in enumerate([c for c in POS if c not in hA]): hA[c_] = [89, 90, 91, 92, 93, 94, 95, 8, 9, 10, 11, 12, 13][i_]

def cmul32(d, a, b, conj=False):
    return ['v_pk_mul_f32 %s, %s, %s op_sel:[0,0] op_sel_hi:[1,0]' % (P(d), P(a), P(b)),
            'v_pk_fma_f32 %s, %s, %s, %s op_sel:[1,1,0] op_sel_hi:[0,1,1] %s' % (P(d), P(a), P(b), P(d), 'neg_hi:[1,0,0]' if conj else 'neg_lo:[1,0,0]')]
def cmul16(d, a, b, conj=False):
    return ['v_pk_mul_f16 v%d, v%d, v%d op_sel:[0,0] op_sel_hi:[1,0]' % (d, a, b),
            'v_pk_fma_f16 v%d, v%d, v%d, v%d op_sel:[1,1,0] op_sel_hi:[0,1,1] %s' % (d, a, b, d, 'neg_hi:[1,0,0]' if conj else 'neg_lo:[1,0,0]')]
def cvt16(d, a): return ['v_cvt_pk_f16_f32 v%d, v%d, v%d' % (d, a, a + 1)]
def wrB(j, r): return ['ds_write_addtid_b32 v%d offset:%d ; @w:sB' % (r, boff(j))]
hA0 = hA
hA1 = dict(hA); hA1.update({256 * m: 242 + m for m in range(9)})
def wrA(c, hA): return ['ds_write_addtid_b32 v%d offset:%d ; @w:sA' % (hA[c], AOFF[c])]

nstamp = [0]
SPINAT = opt('spinat', -1)
spc = [0, 0]
def stamp(b, force=False):
    if SPINAT >= 0:
        i = nstamp[0]; nstamp[0] += 1
        if i == SPINAT:
            spc[0] += 1
            b.raw('L_spin%d:\n    s_memrealtime s[96:97]\n    s_waitcnt lgkmcnt(0)\n    s_cselect_b32 s95, 1, 0\n    s_sub_u32 s96, s96, s98\n    s_cmp_lt_u32 s96, 1000\n    s_cbranch_scc0 L_spx%d\n    s_cmp_eq_u32 s95, 1\n    s_branch L_spin%d\nL_spx%d:\n    s_cmp_eq_u32 s95, 1' % (spc[0], spc[0], spc[0], spc[0]))
            b.lds = []; b.smem = []
        return
    if not STAMPS or (MINST and not force): return
    i = nstamp[0]; nstamp[0] += 1
    assert 60 + 2 * i + 1 <= 95
    b.raw('    s_memtime s[%d:%d]' % (60 + 2 * i, 61 + 2 * i))
    b.raw('    s_waitcnt lgkmcnt(0)')
    b.lds = []; b.smem = []

def gen_head(rnd):
    r = (R0, R1)[rnd]
    L = []
    L += ['v_mul_f32 v%d, %s, v%d' % (r.T0, f32(LOG2E), r.T0),
          'v_exp_f32 v%d, v%d' % (r.T0, r.T0),
          'v_cvt_pk_bf16_f32 v%d, 0, v%d' % (r.T0, r.T0),
          'v_mul_f32 v%d, v%d, v%d' % (r.T0, r.T0, vNEGDTL),
          'v_exp_f32 v%d, v%d' % (r.T0, r.T0),
          'v_mul_f32 v%d, v%d, v%d' % (r.T1, r.T0 + 1, vJHI),
          'v_rndne_f32 v%d, v%d' % (r.T1, r.T1),
          'v_fma_f32 v%d, v%d, v%d, -v%d' % (r.T1, r.T0 + 1, vJHI, r.T1),
          'v_fmac_f32 v%d, v%d, v%d' % (r.T1, r.T0 + 1, vJLO),
          'v_cos_f32 v%d, v%d' % (r.z, r.T1),
          'v_sin_f32 v%d, v%d' % (r.z + 1, r.T1),
          'v_pk_mul_f32 %s, %s, %s op_sel:[0,0] op_sel_hi:[1,0]' % (P(r.z), P(r.z), P(r.T0))]
    L += cmul32(r.z2, r.z, r.z) + cmul32(r.z4, r.z2, r.z2) + cmul32(r.w1, r.z4, r.z4) + cmul32(r.w2, r.w1, r.w1) + cmul32(r.w4, r.w2, r.w2)
    L += cmul32(r.w8, r.w4, r.w4) + cmul32(r.w16, r.w8, r.w8) + cmul32(r.ZZ, r.w16, r.w16) + cmul32(r.w3, r.w2, r.w1) + cmul32(r.w12, r.w8, r.w4)
    L += cvt16(r.hz, r.z) + cvt16(r.hz2, r.z2) + cvt16(r.hz4, r.z4)
    L += ['v_pk_mul_f32 %s, %s, s[44:45] op_sel:[0,0] op_sel_hi:[1,0] neg_hi:[0,1]' % (P(r.G0), P(r.G0))]
    return L
def gen_A(rnd):
    r = (R0, R1)[rnd]
    hA = (hA0, hA1)[rnd]
    L = cvt16(hA[0], r.G0) + wrA(0, hA)
    for d, a_, b_ in ((1, 0, r.hz), (2, 0, r.hz2), (4, 0, r.hz4), (3, 1, r.hz2), (5, 1, r.hz4), (6, 2, r.hz4), (7, 3, r.hz4)):
        L += cmul16(hA[d], hA[a_], b_, conj=True) + wrA(d, hA)
    g = [r.G0, r.G1]
    for m in range(1, 9):
        L += cmul32(g[m & 1], g[(m - 1) & 1], r.ZZ, conj=True) + cvt16(hA[256 * m], g[m & 1]) + wrA(256 * m, hA)
    for d, a_, b_ in ((258, 256, r.hz2), (260, 256, r.hz4), (262, 258, r.hz4), (516, 512, r.hz4), (772, 768, r.hz4)):
        L += cmul16(hA[d], hA[a_], b_, conj=True) + wrA(d, hA)
    return L
def rd_A():
    L = []
    for s in range(4):
        L += ['ds_read_b128 %s, v%d offset:%d ; @r:sA' % (Q(FA0 + 4 * s), vKA, 16 * s), 'ds_read_b128 %s, v%d offset:%d ; @r:sA' % (Q(FA1 + 4 * s), vKA1, 16 * s)]
    return L
def gen_B(rnd):
    r = (R0, R1)[rnd]
    L = []
    for j, x in ((1, r.w1), (2, r.w2), (3, r.w3), (4, r.w4), (8, r.w8), (12, r.w12)):
        L += cvt16(hB[j], x) + wrB(j, hB[j])
    L += cvt16(TMPH[0], r.w16) + ['ds_write_addtid_b32 v%d offset:%d ; @w:sB' % (TMPH[0], MOFF)]
    n = 1
    for b_ in (4, 8, 12):
        for a_ in (1, 2, 3):
            t = TMPH[n % len(TMPH)]; n += 1
            L += cmul16(t, hB[a_], hB[b_]) + wrB(a_ + b_, t)
    return L
def rd_B():
    L = []
    for s in range(4):
        L += ['ds_read_b128 %s, v%d offset:%d ; @r:sB' % (Q(FB0 + 4 * s), vKB, 16 * s), 'ds_read_b128 %s, v%d offset:%d ; @r:sB' % (Q(FM + 4 * s), vKM, 16 * s)]
    return L
def gen_B1():
    L = []
    for k in range(0, 16, 2):
        a, c = cmul16(FB1 + k, FB0 + k, FM + k), cmul16(FB1 + k + 1, FB0 + k + 1, FM + k + 1)
        L += [a[0], c[0], a[1], c[1]]
    return L
TACC = lambda a, b_: ACC + 8 * a + 4 * b_
def kgen_mfmas(rnd, bsel):
    L = []
    for s in range(4):
        for a in (0, 1):
            L.append('v_mfma_f32_16x16x32_f16 %s, %s, %s, %s' % (Q(TACC(a, bsel)), Q((FA0, FA1)[a] + 4 * s), Q((FB0, FB1)[bsel] + 4 * s), '0' if (rnd == 0 and s == 0) else Q(TACC(a, bsel))))
    return L
def fin_stream(rnd):
    g = gen_B1()
    return g[:16] + merge(g[16:], kgen_mfmas(rnd, 0)) + kgen_mfmas(rnd, 1)
def stage_u(k, t0):
    a, b_ = vU + 4 * k, vU + 4 * k + 2
    L = []
    for c in range(4):
        L += ['v_perm_b32 v%d, v%d, v%d, %s' % (t0 + c, b_ + c // 2, a + c // 2, 's46' if c % 2 == 0 else 's47')]
    for c in range(4):
        off = UBASE + 64 - M0U + c * USTR + 1024 * k; assert off < 65536
        L += ['ds_write_addtid_b32 v%d offset:%d' % (t0 + c, off)]
    return L
def merge(*streams):
    items = []
    for s in streams:
        n = len(s)
        items += [((i + 0.5) / n, x) for i, x in enumerate(s)]
    items.sort(key=lambda t: t[0])
    return [x for _, x in items]

from asmb import Ins
def cluster(L, k):
    out = []; pend = []
    def flush():
        out.extend(pend); pend.clear()
    for t in L:
        if t == 'MID': out.append(t); continue
        x = Ins(t)
        if x.kind in ('dsw', 'dsr'):
            pend.append(t)
            if len(pend) >= k: flush()
            continue
        for q in pend:
            y = Ins(q)
            if set(x.wr) & (set(y.rd) | set(y.wr)) or set(x.rd) & set(y.wr): flush(); break
        out.append(t)
    flush()
    return out

PL = opt('pref', 4)
PREFC = '' if not PL else '''s_lshr_b32 s34, s2, 3
s_mul_i32 s34, s34, %d
v_and_b32 v4, %d, v0
v_mad_u32_u24 v4, v2, %d, v4
v_add_u32 v4, s34, v4
v_and_b32 v4, 127, v4
v_lshlrev_b32 v4, 7, v4
v_min_u32 v4, L_tab-L_pc, v4
global_load_dword v253, v4, s[52:53]''' % (8 * PL, PL - 1, PL)
b = Builder()
b.raw(NAME + ':')
if STAMPS: b.raw('    s_memtime s[56:57]\n    s_memrealtime s[98:99]')
if SPINAT >= 0: b.raw('    s_memrealtime s[98:99]')
b('s_load_dwordx16 s[4:19], s[0:1], 0')
if STAMPS: b('s_load_dwordx2 s[58:59], s[0:1], 72')
b('''
s_and_b32 s33, s2, 7
s_cmp_eq_u32 s33, 7
s_cbranch_scc1 L_end
s_cmp_ge_u32 s2, 256
s_cbranch_scc1 L_end
v_lshrrev_b32 v2, 6, v0
v_and_b32 v1, 63, v0
s_getpc_b64 s[52:53]
L_pc:
PREF
s_add_u32 s52, s52, L_tab-L_pc
s_addc_u32 s53, s53, 0
v_lshlrev_b32 v3, 4, v1
v_readfirstlane_b32 s28, v2
global_load_dwordx4 v[20:23], v3, s[52:53]
global_load_dwordx4 v[24:27], v3, s[52:53] offset:1024
s_lshr_b32 s34, s2, 3
s_and_b32 s31, s34, 1
s_lshr_b32 s34, s34, 1
s_lshl_b32 s32, s33, 4
s_add_u32 s32, s32, s34
s_and_b32 s29, s28, 3
s_lshr_b32 s30, s28, 2
s_lshl_b32 s33, s32, 2
s_add_u32 s33, s33, s29
s_lshl_b32 s33, s33, 9
s_lshl_b32 s34, s30, 8
s_add_u32 s33, s33, s34
v_lshl_add_u32 v5, v1, 1, s33
ZEROs_lshl_b32 s35, s32, 3
s_mul_i32 s33, s29, %d
s_add_u32 s33, s33, s35
s_movk_i32 s34, 1792
v_mul_u32_u24 v28, s34, v1
v_add_u32 v28, s33, v28
s_lshr_b32 s33, s2, 3
s_lshl_b32 s33, s33, 2
s_add_u32 s33, s33, s29
s_lshl_b32 s33, s33, 4
v_and_b32 v4, 15, v1
v_add_u32 v4, s33, v4
s_movk_i32 s34, 896
v_mul_u32_u24 v4, s34, v4
v_add_u32 v4, s35, v4
s_mov_b32 s48, %d
s_mov_b32 s23, 0x00020000
s_mov_b32 s26, %d
s_cmp_eq_u32 s31, 0
s_cselect_b32 s22, s26, %d
'''.replace('PREF', PREFC).replace('ZERO', ''.join('v_mov_b32 v%d, 0\n' % x for r in (R0, R1) for x in (r.T0, r.T0 + 1, r.G0, r.G0 + 1))) % (128 * 896, 512 * 896, 2048 * 896, UCLAMP * 896))
b.wait(lgkm=0)
stamp(b)
b('''
global_load_short_d16_hi v{a.T0}, v5, s[6:7]
global_load_short_d16_hi v{a1}, v5, s[8:9]
s_load_dwordx2 s[36:37], s[14:15], s35
s_load_dwordx2 s[38:39], s[16:17], s35
global_load_short_d16_hi v{a.G0}, v5, s[10:11]
global_load_short_d16_hi v{ag1}, v5, s[12:13]
global_load_short_d16_hi v{b.G0}, v5, s[10:11] offset:128
global_load_short_d16_hi v{bg1}, v5, s[12:13] offset:128
global_load_short_d16_hi v{b.T0}, v5, s[6:7] offset:128
global_load_short_d16_hi v{b1}, v5, s[8:9] offset:128
s_mov_b32 s20, s4
s_mov_b32 s21, s5
s_cmp_eq_u32 s30, 0
s_cbranch_scc1 L_nopf
'''.format(a=R0, b=R1, a1=R0.T0 + 1, ag1=R0.G0 + 1, b1=R1.T0 + 1, bg1=R1.G0 + 1))
so = ['0', 's48', 's49', 's54']
ul = ['buffer_load_dwordx2 %s, v28, s[20:23], %s offen%s' % (P(vU + 2 * i), so[i // 2], ' offset:896' if i & 1 else '') for i in range(8)]
b.raw('    global_load_dword v254, v4, s[4:5]')
b('L_nopf:\ns_barrier\ns_cbranch_scc0 L_nou')
for x in ul[:4]: b.raw('    ' + x)
b('''
s_mul_i32 s33, s29, %d
s_add_u32 s33, s33, %d
s_mov_b32 m0, s33
v_mov_b32 v44, 0
s_mul_i32 s33, s29, %d
s_add_u32 s33, s33, %d
''' % (KCH, M0K, USTR, M0K))
for ph in PH: b('ds_write_addtid_b32 v44 offset:%d' % (KBASE - M0K + ph))
b('s_mov_b32 m0, s33\nds_write_addtid_b32 v44 offset:%d' % (UBASE - 192 - M0K))
b('L_nou:')
b('''
s_mul_i32 s40, s28, {wstr}
s_mov_b32 m0, s40
v_mov_b32 v44, 0x3c00
s_mov_b32 s49, {q2}
ds_write_addtid_b32 v44 offset:{c0row}
s_mov_b32 s54, {q3}
s_mul_i32 s43, s29, {wstr}
s_add_u32 s42, s43, {yb}
s_mul_i32 s41, s29, {kch}
s_add_u32 s3, s41, {m0k}
s_mul_i32 s34, s29, {ustr}
v_mov_b32 v46, {log2e}
v_mov_b32 v45, {ihi}
v_mov_b32 v47, {ilo}
s_lshl_b32 s33, s29, 4
'''.format(q2=1024 * 896, q3=1536 * 896, wstr=WSTR, yb=YB, kch=KCH, m0k=M0K, c0row=boff(0), ustr=USTR, log2e=f32(LOG2E), ihi=f32(I_HI), ilo=f32(I_LO)))
TAB = []
for l in range(64):
    i16 = l & 15; kgp = 128 * ((l >> 4) & 1) + 64 * (l >> 5)
    TAB.append([AOFF[AROWS[0][i16]] + kgp, AOFF[AROWS[1][i16]] + kgp, boff(i16) + kgp, MOFF + kgp])
for l in range(64):
    h = l >> 5; row = l & 31; g1 = (l >> 4) & 1
    TAB.append([KBASE + PH[row & 3] + 16 * ((row >> 2) + h), KBASE + PH[2] * h + 4 * row,
                UBASE + 96 - 64 * h - 8 * ((l >> 2) & 3) + 32 * g1 + 8 * (l & 3), 0xffffffff if l & 1 else 0])
b.wait(lgkm=0)
stamp(b)
b('''
s_lshr_b64 s[36:37], s[36:37], s33
s_lshl_b32 s36, s36, 16
v_mul_f32 v18, s36, v46
v_exp_f32 v18, v18
s_nop 0
v_cvt_pk_bf16_f32 v18, 0, v18
v_mul_f32 v14, {nlog2e}, v18
v_mul_f32 v15, v45, v18
v_fma_f32 v16, v18, v45, -v15
v_fmac_f32 v16, v18, v47
'''.format(nlog2e=f32(-LOG2E)))
b.raw('    s_waitcnt vmcnt(4)')
b('s_cmp_eq_u32 s30, 0\ns_cbranch_scc1 L_w7')
b.raw('    s_waitcnt vmcnt(1)')
b('L_w7:')
b.vm = []
stamp(b)
if PRIO: b('s_setprio 3')
scale = '''
v_max3_f32 v176, |v56|, |v57|, |v214|
v_max_f32 v176, v176, |v215|
v_max_u32_dpp v176, v176, v176 row_shr:1 row_mask:0xf bank_mask:0xf
v_max_u32_dpp v176, v176, v176 row_shr:2 row_mask:0xf bank_mask:0xf
v_max_u32_dpp v176, v176, v176 row_shr:4 row_mask:0xf bank_mask:0xf
v_max_u32_dpp v176, v176, v176 row_shr:8 row_mask:0xf bank_mask:0xf
v_max_u32_dpp v176, v176, v176 row_bcast:15 row_mask:0xa bank_mask:0xf
v_max_u32_dpp v176, v176, v176 row_bcast:31 row_mask:0xc bank_mask:0xf
v_readlane_b32 s33, v176, 63
s_lshr_b32 s33, s33, 23
s_sub_u32 s33, 267, s33
s_min_u32 s33, s33, 253
s_lshl_b32 s44, s33, 23
s_sub_u32 s33, 255, s33
s_lshl_b32 s45, s33, 23
v_mul_f32 v18, s45, v18
v_add_u32 v20, s40, v20
v_add_u32 v21, s40, v21
v_add_u32 v22, s40, v22
v_add_u32 v23, s40, v23
'''.strip().split('\n')
assert R0.G0 == 56 and R1.G0 == 214
gA0 = gen_A(0); nnear = 2 + 7 * 3
ph1 = schedule(scale + gen_head(0) + gen_B(0) + gA0[:nnear])
ph2 = merge(schedule(gA0[nnear:]), rd_B(), schedule(gen_head(1)))
ph3 = rd_A() + merge(schedule(gen_B(1)), fin_stream(0))
ph4 = merge(schedule(gen_A(1)), rd_B())
if opt('rdfirst', 1):
    ph2 = rd_B() + merge(schedule(gA0[nnear:]), schedule(gen_head(1)))
    ph4 = rd_B() + schedule(gen_A(1))
allk = ph1 + ph2 + ['MID'] + ph3 + ph4
if opt('cl', 2) > 1: allk = cluster(allk, opt('cl', 2))
S2 = opt('s2', 0)
def pace(V, L, k0=0):
    return merge(V, L) if L else V
if S2 == 2:
    def parts_A(rnd):
        r = (R0, R1)[rnd]; hA = (hA0, hA1)[rnd]
        g = [r.G0, r.G1]
        gch = cvt16(hA[0], r.G0)
        for m in range(1, 9): gch += cmul32(g[m & 1], g[(m - 1) & 1], r.ZZ, conj=True) + cvt16(hA[256 * m], g[m & 1])
        pr = lambda lst: [x for d, a_, b_ in lst for x in cmul16(hA[d], hA[a_], b_, conj=True) + wrA(d, hA)]
        near = wrA(0, hA) + pr(((1, 0, r.hz), (2, 0, r.hz2), (4, 0, r.hz4), (3, 1, r.hz2), (5, 1, r.hz4), (6, 2, r.hz4), (7, 3, r.hz4)))
        o1 = wrA(256, hA) + pr(((258, 256, r.hz2), (260, 256, r.hz4), (262, 258, r.hz4)))
        far = [x for m in range(2, 9) for x in wrA(256 * m, hA)]
        farp = pr(((516, 512, r.hz4), (772, 768, r.hz4)))
        return gch, near, o1, far, farp
    g0, n0, o0, f0, fp0 = parts_A(0); g1, n1, o1_, f1, fp1 = parts_A(1)
    rA0 = rd_A()[0::2]; rA1 = rd_A()[1::2]
    mm = lambda rnd, a, bs: [x for x in kgen_mfmas(rnd, bs)[a::2]]
    gb1 = gen_B1()
    PA = schedule2(scale + gen_head(0) + gen_head(1) + g0 + g1 + gen_B(0) + n0 + o0 + f0 + fp0, pace=opt('pace', 3), lowq=opt('lowq', 1))
    cv1 = gen_B(1)
    PB = rd_B() + merge(schedule(cv1), rd_A(), gb1)
    PC = merge(kgen_mfmas(0, 0) + kgen_mfmas(0, 1), schedule(f1 + fp1 + o1_))
    nn = schedule(n1)
    PD = rd_B() + rA1 + nn
    PE = rA0 + gb1[:8] + merge(gb1[8:], mm(1, 1, 0) + mm(1, 0, 0)) + merge(mm(1, 1, 1), mm(1, 0, 1))
    full = PA + PB + ['MID'] + PC + PD + PE
    NT = opt('ntail', 32)
    allk = full[:-NT]; tailk = full[-NT:]
    sys.stderr.write(''.join('|' if x == 'MID' else ('M' if 'mfma' in x else ('P' if x.startswith('v_pk_') and '_f32' in x else {'v': 'v', 'd': 'L', 's': 's'}[x[0]])) for x in full) + '\n')
if '--loopk' in args:
    b.raw('    s_waitcnt vmcnt(0)')
    b('s_setprio 0\ns_barrier')
    stamp(b, True)
    b('s_mov_b32 s96, 10')
    if '--solo' in args: b('s_cmp_eq_u32 s30, 0\ns_cbranch_scc0 L_loopx')
    b.raw('L_loopk:')
    blk = [x for x in allk if x != 'MID'] + (tailk if S2 else rd_A() + fin_stream(1))
    if '--nomfma' in args: blk = [x for x in blk if 'mfma' not in x]
    if '--nowr' in args: blk = [x for x in blk if 'ds_write' not in x]
    if '--nord' in args: blk = [x for x in blk if 'ds_read' not in x]
    if '--novalu' in args: blk = [x for x in blk if not x.startswith('v_') or 'mfma' in x]
    if '--nopk32' in args: blk = [x for x in blk if not ('v_pk_' in x and 'f32' in x)]
    for t in blk: b(t)
    b.wait(lgkm=0)
    b('s_nop 7\ns_nop 7\ns_sub_u32 s96, s96, 1\ns_cmp_lg_u32 s96, 0\ns_cbranch_scc1 L_loopk\nL_loopx:')
    stamp(b, True)
    b('s_barrier')
    stamp(b, True)
PP = [int(len(allk) * float(x)) for x in opt('pp', '0.25,0.5,0.75').split(',')]
UP = [int(len(allk) * float(x)) for x in opt('up', '0.17,0.34,0.51,0.68').split(',')]
for i, t in enumerate(allk):
    for k, pt in enumerate(UP):
        if i == pt:
            b('s_cmp_eq_u32 s30, 0\ns_cbranch_scc0 L_nu%d' % k)
            b.raw('    ' + ul[4 + k])
            b('L_nu%d:' % k)
    for k, pt in enumerate(PP):
        if i == pt and PRIO: b('s_setprio %d' % (2 - k))
    if t == 'MID': stamp(b)
    else: b(t)
stamp(b)
if S2:
    m1 = tailk
    assert not any('addtid' in x for x in m1)
else:
    for t in rd_A(): b(t)
    m1 = fin_stream(1)
    NSH = opt('nsh', 16)
    for t in m1[:NSH]: b(t)
    m1 = m1[NSH:]
b('s_cmp_eq_u32 s30, 0')
b('s_cbranch_scc1 L_F')

DPHYS = {}
for (a_, r_), (dx, dy) in DMAP.items(): DPHYS[dx] = TACC(a_, 0) + r_; DPHYS[dy] = TACC(a_, 1) + r_
D = lambda i: DPHYS[i]
NX = 13
PARTNER = {}
for (dx, dy) in DMAP.values(): PARTNER[dx] = dy; PARTNER[dy] = dx
BFM = {}
BF = lambda m: BFM[m]
def set_bf(first):
    BFM.clear()
    for i, m in enumerate(first): BFM[m] = 224 + 4 * i
    for i, m in enumerate([m for m in range(32) if m not in first]): BFM[m] = 112 + 4 * i
def rdB_lines(m): return ['ds_read_b64_tr_b16 %s, v%d offset:%d' % (P(BF(m)), vCB, 128 * m + 32), 'ds_read_b64_tr_b16 %s, v%d offset:%d' % (P(BF(m) + 2), vCB, 128 * m)]

def kfin_parts():
    dp = 'bank_mask:0xf'
    cv = lambda d, x, y: 'v_cvt_pk_bf16_f32 v%d, v%d, v%d' % (d, x, y)
    fm = lambda i: 'v_fma_f32 v%d, v%d, v%d, v%d' % (D(i), D(i), vMULT, 192 + i)
    wr = lambda r, ph, off: 'ds_write_addtid_b32 v%d offset:%d' % (r, KBASE - M0K + KPADB + PH[ph] + off)
    nx = lambda s_, cur, nxt: ['v_mov_b32_dpp v%d, v%d wave_rol:1 row_mask:0xf %s' % (s_, D(nxt), dp),
                               'v_mov_b32_dpp v%d, v%d wave_shl:1 row_mask:0xf %s' % (s_, D(cur), dp)]
    sw = lambda x: 'v_permlane16_swap_b32 v%d, v%d' % (D(x), D(PARTNER[x]))
    p0 = [fm(0), fm(1), fm(2), fm(3), cv(206, D(0), D(1)), cv(207, D(2), D(3)), fm(5), fm(7), 'v_permlane16_swap_b32 v206, v207',
          'ds_write_b32 v%d, v206 offset:%d' % (vKW0, KPADB), 'ds_write_b32 v%d, v207 offset:%d' % (vKW0, KPADB + PH[1])]
    p1 = [fm(4), fm(6), sw(5), fm(8), sw(4), 'v_mov_b32 v210, v%d' % D(7), fm(10), cv(208, D(4), D(5)),
          'v_mov_b32_dpp v210, v%d wave_rol:1 row_mask:0x8 %s' % (D(8), dp), fm(9),
          'ds_write_b32 v%d, v208 offset:%d' % (vKW0, KPADB + 128),
          'v_mov_b32_dpp v210, v%d wave_shl:1 row_mask:0xc %s' % (D(7), dp), fm(11),
          cv(209, D(6), 210), 'ds_write_b32 v%d, v209 offset:%d' % (vKW0, KPADB + 128 + PH[1])]
    n8 = nx(211, 8, 10)
    p2 = [sw(8), sw(9), fm(12), n8[0], cv(212, D(8), D(9)), n8[1], wr(212, 0, 256), wr(212, 1, 256), cv(213, D(8), 211), cv(214, D(9), 211), wr(213, 2, 256), wr(214, 3, 256)]
    parts = [(256, p0), (512, p1), (1024, p2)]
    for (r, cur, nxt, off, lim) in ((215, 10, 11, 512, 1536), (219, 11, 12, 768, 2048)):
        n = nx(r, cur, nxt)
        L = [n[0], 's_nop 0', n[1], 's_nop 0', cv(r + 2, D(cur), r), 'v_bfi_b32 v%d, v%d, v%d, v%d' % (r + 1, vODD, r, D(cur)),
             wr(r + 2, 1, off), cv(r + 3, D(cur), r + 1), wr(r + 2, 2, off), wr(r + 2, 3, off), wr(r + 3, 0, off)]
        parts.append((lim, [x for x in L if x != 's_nop 0']))
    return parts

def conv_mfma(b, T, nB0):
    tiles = TILES[T]
    seq = []
    for ti, c0 in enumerate(tiles):
        ms = list(range(NBLK(c0)))
        if ti == 0 and T == 1 and opt('desc0', 1): ms = ms[::-1]
        if ti == 1 and T == 0 and opt('desc0', 1): ms = ms[::-1]
        if ti == 2 and T == 0 and opt('desc2', 1): ms = [4, 3, 2, 1, 5, 6, 7, 8, 0]
        if ti == 3 and T == 0 and opt('desc3', 1): ms = list(range(15, -1, -1)) + ms[16:]
        if ti == 1 and T == 1 and opt('desc3', 1): ms = list(range(12, -1, -1)) + ms[13:]
        seq += [(ti, c0, m) for m in ms]
    last = {}
    for idx, (ti, c0, m) in enumerate(seq): last[ti] = idx
    AB = opt('ab', 4); NB = 2 * AB
    ABUF = [240, 244, 248, 252, 56, 60, 2, 6][:NB]
    acc = lambda ti: 64 + 16 * (ti % 3)
    dp = 'row_mask:0xf bank_mask:0xf'
    A2 = lambda par, g: 36 + 8 * par + g
    A1 = lambda par, g: 40 + 8 * par + g
    def combine(ti, prev, groups):
        a = acc(ti); par = ti & 1
        L = []
        lv = [(lambda g: a + 4 * g + 3, lambda g: a + 4 * g + 2, lambda g: A2(par, g)),
              (lambda g: A2(par, g), lambda g: a + 4 * g + 1, lambda g: A1(par, g)),
              (lambda g: A1(par, g), lambda g: a + 4 * g, lambda g: 52 + g)]
        for li, (src, add, dst) in enumerate(lv):
            firsts = []; seconds = []
            for g in groups:
                p = src(g - 1) if g > groups[0] else (prev[li] if prev else None)
                if p is not None:
                    firsts.append('v_add_f32_dpp v%d, v%d, v%d wave_ror:1 %s' % (dst(g), p, add(g), dp))
                    seconds.append('v_add_f32_dpp v%d, v%d, v%d wave_shr:1 %s' % (dst(g), src(g), add(g), dp))
                else:
                    seconds.append('v_add_f32_dpp v%d, v%d, v%d wave_shr:1 %s bound_ctrl:0' % (dst(g), src(g), add(g), dp))
            L += firsts + seconds
        L.append('M0Y')
        for g in groups: L.append('ds_write_addtid_b32 v%d offset:%d' % (52 + g, ti * 1024 + g * 256))
        return L + (['MARK'] + ['GAP'] * opt('bgap', 2) + ['BAR'] if len(groups) > 1 else []), (a + 15, A2(par, 3), A1(par, 3))
    fq = []
    prev = None
    for ti, c0 in enumerate(tiles):
        if c0 in (544, 1536): prev = None
        L, prev = combine(ti, prev, (3,) if c0 < 0 else (0, 1, 2, 3))
        fq += [(last[ti] + CDELAY, x) for x in L]
    kq = [(lim, x) for lim, L in kfin_parts() for x in L]
    order = []
    for _, _, m in seq:
        if m not in order: order.append(m)
    loaded = set(order[:nB0])
    bq = [(m, x) for m in order[nB0:] for x in rdB_lines(m)]
    st = {'bars': 0, 'm0': 'x'}
    S2BAR = 1
    def setm0(w):
        if st['m0'] != w:
            b('s_mov_b32 m0, %s' % ('s3' if w == 'k' else 's42')); st['m0'] = w
    def emit_k():
        x = kq.pop(0)[1]
        if 'addtid' in x: setm0('k')
        b(x)
    def emit_f(x):
        if x == 'GAP' or x == 'M0Y': return
        if x == 'MARK':
            b.lds[-1] = b.lds[-1] | {('x', 'ymark')}; return
        if x == 'BAR':
            n = b._need(b.lds, {('x', 'ymark')})
            if n is not None: b.wait(lgkm=n)
            b('s_barrier'); st['bars'] += 1; return
        if 'addtid' in x: setm0('y')
        b(x)
    def emit_b():
        m, x = bq.pop(0)
        if 176 <= BF(m) < 224:
            while kq: emit_k()
        b(x)
        if not bq or bq[0][0] != m: loaded.add(m)
    def issue_reads(i):
        ti, c0, m = seq[i]
        if m >= 16:
            while st['bars'] < S2BAR: emit_f(fq.pop(0)[1])
        while m not in loaded: emit_b()
        maxtap = c0 - 64 * m - 32 + 224 + 63
        lims = [0, 256, 512, 1024, 1536, 2048]
        while kq and lims[lims.index(kq[0][0]) - 1] <= maxtap: emit_k()
        off = KPADB + (c0 - 64 * m - 32) // 2
        assert off >= 0 and off % 16 == 0
        b('ds_read_b128 %s, v%d offset:%d' % (Q(ABUF[i % NB]), vCA, off))
    cost = {'c': 0, 'lds': False}
    orig = b._emit
    def hooked(ins):
        if ins.kind == 'mfma': cost['c'] = 0; cost['lds'] = False
        else:
            l = ins.kind in ('dsr', 'dsw')
            cost['c'] += 4 * max(ins.ws, 1) + (8 if l and not cost['lds'] else 0); cost['lds'] = l
        orig(ins)
    b._emit = hooked
    def price(x):
        if x in ('GAP', 'M0Y', 'MARK'): return 0
        if x == 'BAR': return 8
        l = x.startswith('ds_')
        return 4 + (8 if l and not cost['lds'] else 0)
    def prereq(lo, hi):
        for i in range(lo, min(hi, len(seq))):
            ti, c0, m = seq[i]
            if m >= 16:
                while st['bars'] < S2BAR: emit_f(fq.pop(0)[1])
            maxtap = c0 - 64 * m - 32 + 224 + 63
            lims = [0, 256, 512, 1024, 1536, 2048]
            while kq and lims[lims.index(kq[0][0]) - 1] <= maxtap: emit_k()
        for i in range(lo, min(hi, len(seq))):
            while seq[i][2] not in loaded: emit_b()
    def batch(lo, hi):
        prereq(lo, hi)
        for i in range(lo, min(hi, len(seq))): issue_reads(i)
    F0 = opt('first', 2)
    batch(0, F0)
    stamp(b, True)
    nxt = F0
    started = set()
    BUD = opt('bud', 20)
    for i, (ti, c0, m) in enumerate(seq):
        a = acc(ti)
        if i >= AB and i % AB == 0:
            j = min(i + AB, len(seq)) - 1
            regs = {('v', ABUF[j % NB])} | {('v', BF(seq[k][2]) + 2) for k in range(i, j + 1)}
            n = b._need(b.lds, regs)
            if n is not None: b.wait(lgkm=n)
        b('v_mfma_f32_32x32x16_bf16 %s, %s, %s, %s' % (X16(a), Q(ABUF[i % NB]), Q(BF(m)), X16(a) if ti in started else '0'))
        started.add(ti)
        if i == 0 and nxt < AB: batch(nxt, AB); nxt = AB
        elif (i % AB == 0 or (i == 1 and F0 < AB)) and nxt < len(seq) and nxt <= i + AB: batch(nxt, nxt + AB); nxt += AB
        bud = BUD - (4 if (i + 1) % AB == 0 else 0) + (opt('bud0', 4) if st['bars'] < 1 else 0)
        need = {seq[k][2] for k in range(nxt, min(nxt + AB, len(seq)))} - loaded
        okb = lambda: bq and (bq[0][0] < 16 or (st['bars'] >= S2BAR and not kq))
        budf = bud + (opt('budf0', 24) if st['bars'] < opt('nearly', 1) else opt('budf', 0))
        while need and okb() and cost['c'] + price(bq[0][1]) <= bud and not (st['bars'] < 1 and fq[0][0] <= i):
            emit_b(); need -= loaded
        while fq and fq[0][0] <= i and cost['c'] + price(fq[0][1]) <= budf:
            x = fq.pop(0)[1]; emit_f(x)
            if x == 'GAP': break
        while kq and cost['c'] + price(kq[0][1]) <= bud: emit_k()
        while okb() and cost['c'] + price(bq[0][1]) <= bud: emit_b()
    b._emit = orig
    stamp(b, True)
    while fq: emit_f(fq.pop(0)[1])
    return order

def conv_fin(b, T):
    tiles = TILES[T]
    def pre_rd(tis):
        for ti in tis:
            for c in range(4): b('ds_read_u16_d16_hi v%d, v%d offset:%d' % (64 + 4 * ti + c, vUS, 2 * (tiles[ti] + 192) + c * USTR))
    def pre_m(tis):
        for ti in tis:
            r = 64 + 4 * ti
            for c in range(4): b('v_mul_f32 v%d, s%d, v%d' % (r + c, 50 + c, r + c))
            for c in range(4): b('v_cvt_pk_bf16_f32 v%d, 0, v%d' % (r + c, r + c))
    def yrd(ti, r): return ['ds_read2st64_b32 v[%d:%d], v%d offset0:%d offset1:%d' % (r, r + 1, vYR, ti * 4, ti * 4 + 21),
                            'ds_read2st64_b32 v[%d:%d], v%d offset0:%d offset1:%d' % (r + 2, r + 3, vYR, ti * 4 + 42, ti * 4 + 63)]
    def out(ti, y):
        c0 = tiles[ti]; r = 64 + 4 * ti
        if c0 >= 0:
            b('s_mov_b32 s33, %d' % (c0 * 896)); vo, so_ = (vOUT2 if c0 in (544, 1536) else vOUT), 's33'
        else: vo, so_ = 42, '0'
        for c in range(4): b('v_cvt_pk_bf16_f32 v%d, 0, v%d' % (y + c, y + c))
        for c in range(4): b('v_add_f32 v%d, v%d, v%d' % (y + c, y + c, r + c))
        b('v_cvt_pk_bf16_f32 v%d, v%d, v%d\nv_cvt_pk_bf16_f32 v%d, v%d, v%d' % (r, y, y + 1, r + 1, y + 2, y + 3))
        b('buffer_store_dwordx2 v[%d:%d], v%d, s[24:27], %s offen' % (r, r + 1, vo, so_))
    low = [ti for ti, c0 in enumerate(tiles) if c0 + 256 <= 1024]
    high = [ti for ti in range(len(tiles)) if ti not in low]
    pre_rd(low)
    if T == 0: b('v_add_u32 v42, %s, v%d' % (hex((-192 * 896) & 0xffffffff), vOUT))
    pre_m(low)
    stamp(b)
    for t in stage_u(2, 56) + stage_u(3, 60): b(t)
    stamp(b, True)
    first = True
    for ti, c0 in enumerate(tiles):
        if c0 < 0: continue
        b.barrier()
        rds = yrd(ti, 44) + (yrd(0, 48) if (T == 0 and ti == 1) else [])
        for x in rds: b(x)
        if first: pre_rd(high)
        stamp(b)
        out(ti, 44)
        if T == 0 and ti == 1: out(0, 48)
        if first: pre_m(high)
        first = False
    stamp(b, True)

def tail(b):
    if SPINAT == 99:
        b.wait(vm=0); nstamp[0] = 99; stamp(b)
    if STAMPS:
        b.wait(vm=0)
        stamp(b, True)
        b.raw('    s_memrealtime s[96:97]\n    s_waitcnt lgkmcnt(0)')
        n = nstamp[0]
        b('s_lshl_b32 s33, s2, 3\ns_add_u32 s33, s33, s28\ns_lshl_b32 s33, s33, 7\nv_mov_b32 v3, s33')
        for i in range(n):
            b('s_sub_u32 s34, s%d, s56' % (60 + 2 * i))
            b('v_mov_b32 v2, s34')
            b('global_store_dword v3, v2, s[58:59] offset:%d' % (4 * i))
        b('v_mov_b32 v2, s98\nglobal_store_dword v3, v2, s[58:59] offset:120\nv_mov_b32 v2, s96\nglobal_store_dword v3, v2, s[58:59] offset:124')
    b('s_endpgm')

base_stamp = nstamp[0]
parts = [b]
p = b.fork()
p.raw('L_F:')
p.vm = [{('v', vU + 2 * i), ('v', vU + 2 * i + 1)} for i in range(8)]
if PRIO: p('s_setprio %d' % opt('pf1', 1))
p('''
s_lshl_b32 s33, s29, 8
s_add_u32 s55, s33, %d
s_mov_b32 s46, 0x05040100
s_mov_b32 s47, 0x07060302
s_mov_b32 m0, s55
''' % M0U)
for t in merge(stage_u(0, 36) + stage_u(1, 40), m1): p(t)
p('s_mov_b32 m0, s43')
for i in range(NX): p('v_mul_f32 v%d, v%d, v%d' % (D(i), vMULT, D(i)))
for i in range(NX): p('ds_write_addtid_b32 v%d offset:%d' % (D(i), B2 + i * 256))
p('s_mov_b32 m0, s55')
stamp(p)
p.barrier()
if PRIO: p('s_setprio %d' % opt('pfin', 0))
for r in range(64, 84): p('v_mov_b32 v%d, 0' % r)
p('''
s_mov_b32 s24, s18
s_mov_b32 s25, s19
s_mov_b32 s27, 0x00020000
s_lshl_b32 s50, s38, 16
s_and_b32 s51, s38, 0xffff0000
s_lshl_b32 s52, s39, 16
s_and_b32 s53, s39, 0xffff0000
s_lshl_b32 s33, s29, 6
v_add_u32 v45, s33, v1
v_lshlrev_b32 v46, 2, v45
v_add_u32 v29, {yb}, v46
v_lshlrev_b32 v46, 1, v45
v_add_u32 v30, {usb}, v46
s_movk_i32 s34, 896
v_mul_u32_u24 v46, s34, v45
v_add_u32 v31, s35, v46
v_subrev_u32 v46, 32, v45
v_and_b32 v46, 0x40000000, v46
v_add_u32 v32, v31, v46
s_cmp_eq_u32 s31, 0
'''.format(yb=YB, usb=UBASE + 64 - 384))
p('s_cbranch_scc0 L_F1')
parts.append(p)
st2 = nstamp[0]
for T in (0, 1):
    nstamp[0] = st2
    q = p.fork()
    if T == 1: q.raw('L_F1:')
    conv_fin(q, T); tail(q); parts.append(q)
    sys.stderr.write('F T=%d counts %s nops %d\n' % (T, q.count, q.nops))
nstamp[0] = base_stamp
p = b.fork()
if PRIO: p('s_setprio %d' % opt('pm', 3))
p('s_mov_b32 m0, s43')
p.raw('    s_waitcnt vmcnt(0)')
p('v_add_u32 v24, s41, v24\nv_add_u32 v25, s41, v25\nv_add_u32 v26, s34, v26')
BARAT = opt('barat', 16)
for t in m1[:BARAT]: p(t)
p('s_cmp_eq_u32 s31, 0')
p('s_cbranch_scc0 L_M1')
parts.append(p)
st2 = nstamp[0]
nB0 = opt('nb0', 4)
for T in (0, 1):
    nstamp[0] = st2
    q = p.fork()
    if T == 1: q.raw('L_M1:')
    first = [0, 4, 3, 2] if T == 0 else [12, 11, 10, 9]
    set_bf(first)
    q('s_barrier')
    rx = ['ds_read_addtid_b32 v%d offset:%d' % (192 + i, B2 + i * 256) for i in (0, 1, 2, 3, 5, 7, 4, 6, 8, 10, 9, 11, 12)]
    rb = [t for m in first[:nB0] for t in rdB_lines(m)]
    rest = m1[BARAT:]
    if opt('mixrx', 1): seqx = cluster(merge(rx + rb, rest), opt('clx', 3)) if rest else rx + rb
    else: seqx = rx + rb + rest
    for t in seqx: q(t)
    order = conv_mfma(q, T, nB0); assert order[:nB0] == first[:nB0]
    tail(q); parts.append(q)
    sys.stderr.write('M T=%d counts %s nops %d\n' % (T, q.count, q.nops))
sys.stderr.write('main counts %s nops %d\n' % (b.count, b.nops))

ref = open('standalone__ssm_conv_s4d__prompt.s.ref').read().split('\n')
hdr = [l for l in ref if l.startswith(';') and '@launch' not in l]
out = '\n'.join(hdr) + '\n; @launch grid=(256,1,1) block=(512,1,1) lds=%d\n' % LDS_TOTAL
out += '''.amdgcn_target "amdgcn-amd-amdhsa--gfx950"
.text
.globl %s
.p2align 8
.type %s,@function
''' % (NAME, NAME)
parts = [parts[0]] + parts[4:] + parts[1:4]
out += ''.join(p.text() for p in parts)
out += 'L_end:\n    s_endpgm\n.p2align 7\nL_tab:\n' + ''.join('    .long %s\n' % ', '.join(hex(v) for v in row) for row in TAB)
out += '''.section .rodata,"a"
.p2align 6
.amdhsa_kernel %s
  .amdhsa_next_free_vgpr 256
  .amdhsa_next_free_sgpr 102
  .amdhsa_accum_offset 256
  .amdhsa_group_segment_fixed_size 0
  .amdhsa_kernarg_size 80
  .amdhsa_user_sgpr_count 2
  .amdhsa_user_sgpr_kernarg_segment_ptr 1
  .amdhsa_system_sgpr_workgroup_id_x 1
  .amdhsa_float_denorm_mode_32 3
.end_amdhsa_kernel
''' % NAME
out = re.sub(r' ; @[rw]:\w+', '', out)
open(OUT, 'w').write(out)
```

```python
import sys, struct, re
import numpy as np
from asmb import Builder
from sched import schedule, schedule2

args = sys.argv[1:]
def opt(name, default):
    for a in args:
        if a.startswith('--%s=' % name): return type(default)(a.split('=')[1])
    return default
MINST = '--minst' in args
STAMPS = '--stamps' in args or MINST
OUT = [a for a in args if not a.startswith('--')][0]
NAME = 'standalone__ssm_conv_s4d__prompt_kernel'
PRIO = opt('prio', 1); PF = opt('pf', 3); FPER = opt('fper', 4); CDELAY = opt('cdelay', 2)

def f32(x): return '0x%08x' % struct.unpack('<I', struct.pack('<f', x))[0]
LOG2E = 1.4426950408889634
INV2PI = 0.15915494309189535
I_HI = float(np.float32(INV2PI)); I_LO = INV2PI - I_HI

import random
RSW = 272; WSTR = 5376; B2 = 8 * WSTR
STG_END = 2 * B2
KBASE = STG_END; KCH = 4672
UBASE = KBASE + 4 * KCH; USTR = 4160
LDS_TOTAL = UBASE + 4 * USTR
M0U = 64512
M0K = 40000
YB = 4 * WSTR; YCH = WSTR
PH = [0, 1152, 2368, 3520]; KPADB = 128
def boff(j): return RSW * (j ^ 4 if j < 8 else j)
DROWS = {0: (0, 2), 1: (4, 6), 2: (1, 3), 3: (5, 7), 4: (256, 258), 5: (260, 262), 6: (256, 260), 7: (260, 256),
         8: (512, 768), 9: (516, 772), 10: (1024, 1280), 11: (1536, 1792), 12: (2048, 2048), 13: (2048, 2048), 14: (2048, 2048), 15: (2048, 2048)}
DMAP = {(0, 0): (0, 2), (0, 1): (1, 3), (0, 2): (4, 6), (0, 3): (5, 7), (1, 0): (8, 10), (1, 1): (9, 11), (1, 2): (12, 13), (1, 3): (14, 15)}
AROWS = [[None] * 16, [None] * 16]
for (a_, r_), (dx, dy) in DMAP.items():
    AROWS[a_][0 + r_] = DROWS[dx][0]; AROWS[a_][8 + r_] = DROWS[dx][1]
    AROWS[a_][4 + r_] = DROWS[dy][0]; AROWS[a_][12 + r_] = DROWS[dy][1]
POS = sorted(set(AROWS[0]) | set(AROWS[1])); assert len(POS) == 21
_slots = [RSW * r for r in (16, 17, 18)] + [B2 + RSW * r for r in range(19)]
random.seed(3)
def _ok(m):
    for rows in AROWS:
        seen = {}
        for i, c in enumerate(rows):
            key = ((m[c] // 16) + (8 if 4 <= i < 12 else 0)) % 16
            val = (c, 4 <= i < 12)
            if seen.setdefault(key, val) != val: return False
    return True
while True:
    random.shuffle(_slots)
    AOFF = dict(zip(POS, _slots))
    if _ok(AOFF): break
MOFF = _slots[21]
TILES = {0: [-192, 64, 320, 1536, 1792], 1: [544, 800, 1056, 1312]}
NBLK = lambda c0: -(-(c0 // 4 + 64) // 16)
UCLAMP = 1568

P = lambda r: 'v[%d:%d]' % (r, r + 1)
Q = lambda r: 'v[%d:%d]' % (r, r + 3)
X16 = lambda r: 'v[%d:%d]' % (r, r + 15)
vRAW = 2; vU = 226
vNEGDTL = 14; vJHI = 15; vJLO = 16; vMULT = 18
vKA = 20; vKB = 22; vCA = 24; vKW0 = 25; vCB = 26; vODD = 27; vUOFF = 28; vYR = 29; vUS = 30; vOUT = 31; vOUT2 = 32
FB0 = 112; FM = 128; FA0 = 144; FA1 = 160; FB1 = 96; ACC = 176
vKA1 = 21; vKM = 23
class Regs: pass
def mkregs(base32, base16):
    r = Regs()
    (r.z, r.z2, r.z4, r.w1, r.w2, r.w3, r.w4, r.w8, r.w12, r.w16, r.ZZ, r.G0, r.G1, r.T0, r.T1) = [base32 + 2 * i for i in range(15)]
    r.hz, r.hz2, r.hz4 = base16, base16 + 1, base16 + 2
    return r
R0 = mkregs(34, 64); R1 = mkregs(192, 222)
hB = {j: 67 + i for i, j in enumerate((1, 2, 3, 4, 8, 12))}
TMPH = list(range(73, 81)) + [6, 7]
hA = {c: 81 + i for i, c in enumerate((0, 1, 2, 3, 256, 258, 512, 768))}
for i_, c_ in enumerate([c for c in POS if c not in hA]): hA[c_] = [89, 90, 91, 92, 93, 94, 95, 8, 9, 10, 11, 12, 13][i_]

def cmul32(d, a, b, conj=False):
    return ['v_pk_mul_f32 %s, %s, %s op_sel:[0,0] op_sel_hi:[1,0]' % (P(d), P(a), P(b)),
            'v_pk_fma_f32 %s, %s, %s, %s op_sel:[1,1,0] op_sel_hi:[0,1,1] %s' % (P(d), P(a), P(b), P(d), 'neg_hi:[1,0,0]' if conj else 'neg_lo:[1,0,0]')]
def cmul16(d, a, b, conj=False):
    return ['v_pk_mul_f16 v%d, v%d, v%d op_sel:[0,0] op_sel_hi:[1,0]' % (d, a, b),
            'v_pk_fma_f16 v%d, v%d, v%d, v%d op_sel:[1,1,0] op_sel_hi:[0,1,1] %s' % (d, a, b, d, 'neg_hi:[1,0,0]' if conj else 'neg_lo:[1,0,0]')]
def cvt16(d, a): return ['v_cvt_pk_f16_f32 v%d, v%d, v%d' % (d, a, a + 1)]
def wrB(j, r): return ['ds_write_addtid_b32 v%d offset:%d ; @w:sB' % (r, boff(j))]
hA0 = hA
hA1 = dict(hA); hA1.update({256 * m: 242 + m for m in range(9)})
def wrA(c, hA): return ['ds_write_addtid_b32 v%d offset:%d ; @w:sA' % (hA[c], AOFF[c])]

nstamp = [0]
SPINAT = opt('spinat', -1)
spc = [0, 0]
def stamp(b, force=False):
    if SPINAT >= 0:
        i = nstamp[0]; nstamp[0] += 1
        if i == SPINAT:
            spc[0] += 1
            b.raw('L_spin%d:\n    s_memrealtime s[96:97]\n    s_waitcnt lgkmcnt(0)\n    s_cselect_b32 s95, 1, 0\n    s_sub_u32 s96, s96, s98\n    s_cmp_lt_u32 s96, 1000\n    s_cbranch_scc0 L_spx%d\n    s_cmp_eq_u32 s95, 1\n    s_branch L_spin%d\nL_spx%d:\n    s_cmp_eq_u32 s95, 1' % (spc[0], spc[0], spc[0], spc[0]))
            b.lds = []; b.smem = []
        return
    if not STAMPS or (MINST and not force): return
    i = nstamp[0]; nstamp[0] += 1
    assert 60 + 2 * i + 1 <= 95
    b.raw('    s_memtime s[%d:%d]' % (60 + 2 * i, 61 + 2 * i))
    b.raw('    s_waitcnt lgkmcnt(0)')
    b.lds = []; b.smem = []

def gen_head(rnd):
    r = (R0, R1)[rnd]
    L = []
    L += ['v_mul_f32 v%d, %s, v%d' % (r.T0, f32(LOG2E), r.T0),
          'v_exp_f32 v%d, v%d' % (r.T0, r.T0),
          'v_cvt_pk_bf16_f32 v%d, 0, v%d' % (r.T0, r.T0),
          'v_mul_f32 v%d, v%d, v%d' % (r.T0, r.T0, vNEGDTL),
          'v_exp_f32 v%d, v%d' % (r.T0, r.T0),
          'v_mul_f32 v%d, v%d, v%d' % (r.T1, r.T0 + 1, vJHI),
          'v_rndne_f32 v%d, v%d' % (r.T1, r.T1),
          'v_fma_f32 v%d, v%d, v%d, -v%d' % (r.T1, r.T0 + 1, vJHI, r.T1),
          'v_fmac_f32 v%d, v%d, v%d' % (r.T1, r.T0 + 1, vJLO),
          'v_cos_f32 v%d, v%d' % (r.z, r.T1),
          'v_sin_f32 v%d, v%d' % (r.z + 1, r.T1),
          'v_pk_mul_f32 %s, %s, %s op_sel:[0,0] op_sel_hi:[1,0]' % (P(r.z), P(r.z), P(r.T0))]
    L += cmul32(r.z2, r.z, r.z) + cmul32(r.z4, r.z2, r.z2) + cmul32(r.w1, r.z4, r.z4) + cmul32(r.w2, r.w1, r.w1) + cmul32(r.w4, r.w2, r.w2)
    L += cmul32(r.w8, r.w4, r.w4) + cmul32(r.w16, r.w8, r.w8) + cmul32(r.ZZ, r.w16, r.w16) + cmul32(r.w3, r.w2, r.w1) + cmul32(r.w12, r.w8, r.w4)
    L += cvt16(r.hz, r.z) + cvt16(r.hz2, r.z2) + cvt16(r.hz4, r.z4)
    L += ['v_pk_mul_f32 %s, %s, s[44:45] op_sel:[0,0] op_sel_hi:[1,0] neg_hi:[0,1]' % (P(r.G0), P(r.G0))]
    return L
def gen_A(rnd):
    r = (R0, R1)[rnd]
    hA = (hA0, hA1)[rnd]
    L = cvt16(hA[0], r.G0) + wrA(0, hA)
    for d, a_, b_ in ((1, 0, r.hz), (2, 0, r.hz2), (4, 0, r.hz4), (3, 1, r.hz2), (5, 1, r.hz4), (6, 2, r.hz4), (7, 3, r.hz4)):
        L += cmul16(hA[d], hA[a_], b_, conj=True) + wrA(d, hA)
    g = [r.G0, r.G1]
    for m in range(1, 9):
        L += cmul32(g[m & 1], g[(m - 1) & 1], r.ZZ, conj=True) + cvt16(hA[256 * m], g[m & 1]) + wrA(256 * m, hA)
    for d, a_, b_ in ((258, 256, r.hz2), (260, 256, r.hz4), (262, 258, r.hz4), (516, 512, r.hz4), (772, 768, r.hz4)):
        L += cmul16(hA[d], hA[a_], b_, conj=True) + wrA(d, hA)
    return L
def rd_A():
    L = []
    for s in range(4):
        L += ['ds_read_b128 %s, v%d offset:%d ; @r:sA' % (Q(FA0 + 4 * s), vKA, 16 * s), 'ds_read_b128 %s, v%d offset:%d ; @r:sA' % (Q(FA1 + 4 * s), vKA1, 16 * s)]
    return L
def gen_B(rnd):
    r = (R0, R1)[rnd]
    L = []
    for j, x in ((1, r.w1), (2, r.w2), (3, r.w3), (4, r.w4), (8, r.w8), (12, r.w12)):
        L += cvt16(hB[j], x) + wrB(j, hB[j])
    L += cvt16(TMPH[0], r.w16) + ['ds_write_addtid_b32 v%d offset:%d ; @w:sB' % (TMPH[0], MOFF)]
    n = 1
    for b_ in (4, 8, 12):
        for a_ in (1, 2, 3):
            t = TMPH[n % len(TMPH)]; n += 1
            L += cmul16(t, hB[a_], hB[b_]) + wrB(a_ + b_, t)
    return L
def rd_B():
    L = []
    for s in range(4):
        L += ['ds_read_b128 %s, v%d offset:%d ; @r:sB' % (Q(FB0 + 4 * s), vKB, 16 * s), 'ds_read_b128 %s, v%d offset:%d ; @r:sB' % (Q(FM + 4 * s), vKM, 16 * s)]
    return L
def gen_B1():
    L = []
    for k in range(0, 16, 2):
        a, c = cmul16(FB1 + k, FB0 + k, FM + k), cmul16(FB1 + k + 1, FB0 + k + 1, FM + k + 1)
        L += [a[0], c[0], a[1], c[1]]
    return L
TACC = lambda a, b_: ACC + 8 * a + 4 * b_
def kgen_mfmas(rnd, bsel):
    L = []
    for s in range(4):
        for a in (0, 1):
            L.append('v_mfma_f32_16x16x32_f16 %s, %s, %s, %s' % (Q(TACC(a, bsel)), Q((FA0, FA1)[a] + 4 * s), Q((FB0, FB1)[bsel] + 4 * s), '0' if (rnd == 0 and s == 0) else Q(TACC(a, bsel))))
    return L
def fin_stream(rnd):
    g = gen_B1()
    return g[:16] + merge(g[16:], kgen_mfmas(rnd, 0)) + kgen_mfmas(rnd, 1)
def stage_u(k, t0):
    a, b_ = vU + 4 * k, vU + 4 * k + 2
    L = []
    for c in range(4):
        L += ['v_perm_b32 v%d, v%d, v%d, %s' % (t0 + c, b_ + c // 2, a + c // 2, 's46' if c % 2 == 0 else 's47')]
    for c in range(4):
        off = UBASE + 64 - M0U + c * USTR + 1024 * k; assert off < 65536
        L += ['ds_write_addtid_b32 v%d offset:%d' % (t0 + c, off)]
    return L
def merge(*streams):
    items = []
    for s in streams:
        n = len(s)
        items += [((i + 0.5) / n, x) for i, x in enumerate(s)]
    items.sort(key=lambda t: t[0])
    return [x for _, x in items]

from asmb import Ins
def cluster(L, k):
    out = []; pend = []
    def flush():
        out.extend(pend); pend.clear()
    for t in L:
        if t == 'MID': out.append(t); continue
        x = Ins(t)
        if x.kind in ('dsw', 'dsr'):
            pend.append(t)
            if len(pend) >= k: flush()
            continue
        for q in pend:
            y = Ins(q)
            if set(x.wr) & (set(y.rd) | set(y.wr)) or set(x.rd) & set(y.wr): flush(); break
        out.append(t)
    flush()
    return out

PL = opt('pref', 4)
PREFC = '' if not PL else '''s_lshr_b32 s34, s2, 3
s_mul_i32 s34, s34, %d
v_and_b32 v4, %d, v0
v_mad_u32_u24 v4, v2, %d, v4
v_add_u32 v4, s34, v4
v_and_b32 v4, 127, v4
v_lshlrev_b32 v4, 7, v4
v_min_u32 v4, L_tab-L_pc, v4
global_load_dword v253, v4, s[52:53]''' % (8 * PL, PL - 1, PL)
b = Builder()
b.raw(NAME + ':')
if STAMPS: b.raw('    s_memtime s[56:57]\n    s_memrealtime s[98:99]')
if SPINAT >= 0: b.raw('    s_memrealtime s[98:99]')
b('s_load_dwordx16 s[4:19], s[0:1], 0')
if STAMPS: b('s_load_dwordx2 s[58:59], s[0:1], 72')
b('''
s_and_b32 s33, s2, 7
s_cmp_eq_u32 s33, 7
s_cbranch_scc1 L_end
s_cmp_ge_u32 s2, 256
s_cbranch_scc1 L_end
v_lshrrev_b32 v2, 6, v0
v_and_b32 v1, 63, v0
s_getpc_b64 s[52:53]
L_pc:
PREF
s_add_u32 s52, s52, L_tab-L_pc
s_addc_u32 s53, s53, 0
v_lshlrev_b32 v3, 4, v1
v_readfirstlane_b32 s28, v2
global_load_dwordx4 v[20:23], v3, s[52:53]
global_load_dwordx4 v[24:27], v3, s[52:53] offset:1024
s_lshr_b32 s34, s2, 3
s_and_b32 s31, s34, 1
s_lshr_b32 s34, s34, 1
s_lshl_b32 s32, s33, 4
s_add_u32 s32, s32, s34
s_and_b32 s29, s28, 3
s_lshr_b32 s30, s28, 2
s_lshl_b32 s33, s32, 2
s_add_u32 s33, s33, s29
s_lshl_b32 s33, s33, 9
s_lshl_b32 s34, s30, 8
s_add_u32 s33, s33, s34
v_lshl_add_u32 v5, v1, 1, s33
ZEROs_lshl_b32 s35, s32, 3
s_mul_i32 s33, s29, %d
s_add_u32 s33, s33, s35
s_movk_i32 s34, 1792
v_mul_u32_u24 v28, s34, v1
v_add_u32 v28, s33, v28
s_lshr_b32 s33, s2, 3
s_lshl_b32 s33, s33, 2
s_add_u32 s33, s33, s29
s_lshl_b32 s33, s33, 4
v_and_b32 v4, 15, v1
v_add_u32 v4, s33, v4
s_movk_i32 s34, 896
v_mul_u32_u24 v4, s34, v4
v_add_u32 v4, s35, v4
s_mov_b32 s48, %d
s_mov_b32 s23, 0x00020000
s_mov_b32 s26, %d
s_cmp_eq_u32 s31, 0
s_cselect_b32 s22, s26, %d
'''.replace('PREF', PREFC).replace('ZERO', ''.join('v_mov_b32 v%d, 0\n' % x for r in (R0, R1) for x in (r.T0, r.T0 + 1, r.G0, r.G0 + 1))) % (128 * 896, 512 * 896, 2048 * 896, UCLAMP * 896))
b.wait(lgkm=0)
stamp(b)
b('''
global_load_short_d16_hi v{a.T0}, v5, s[6:7]
global_load_short_d16_hi v{a1}, v5, s[8:9]
s_load_dwordx2 s[36:37], s[14:15], s35
s_load_dwordx2 s[38:39], s[16:17], s35
global_load_short_d16_hi v{a.G0}, v5, s[10:11]
global_load_short_d16_hi v{ag1}, v5, s[12:13]
global_load_short_d16_hi v{b.G0}, v5, s[10:11] offset:128
global_load_short_d16_hi v{bg1}, v5, s[12:13] offset:128
global_load_short_d16_hi v{b.T0}, v5, s[6:7] offset:128
global_load_short_d16_hi v{b1}, v5, s[8:9] offset:128
s_mov_b32 s20, s4
s_mov_b32 s21, s5
s_cmp_eq_u32 s30, 0
s_cbranch_scc1 L_nopf
'''.format(a=R0, b=R1, a1=R0.T0 + 1, ag1=R0.G0 + 1, b1=R1.T0 + 1, bg1=R1.G0 + 1))
so = ['0', 's48', 's49', 's54']
ul = ['buffer_load_dwordx2 %s, v28, s[20:23], %s offen%s' % (P(vU + 2 * i), so[i // 2], ' offset:896' if i & 1 else '') for i in range(8)]
b.raw('    global_load_dword v254, v4, s[4:5]')
OT = opt('otouch', 2)
if OT: b.raw('    v_and_b32 v4, %d, v1\n    v_mul_u32_u24 v4, %d, v4\n%s    global_load_dword v255, v4, s[18:19]' % (OT - 1, (2047 // max(OT - 1, 1)) * 896, '    v_add_u32 v4, s35, v4\n' if opt('oown', 1) else ''))
b('L_nopf:\ns_barrier\ns_cbranch_scc0 L_nou')
for x in ul[:4]: b.raw('    ' + x)
b('''
s_mul_i32 s33, s29, %d
s_add_u32 s33, s33, %d
s_mov_b32 m0, s33
v_mov_b32 v44, 0
s_mul_i32 s33, s29, %d
s_add_u32 s33, s33, %d
''' % (KCH, M0K, USTR, M0K))
for ph in PH: b('ds_write_addtid_b32 v44 offset:%d' % (KBASE - M0K + ph))
b('s_mov_b32 m0, s33\nds_write_addtid_b32 v44 offset:%d' % (UBASE - 192 - M0K))
b('L_nou:')
b('''
s_mul_i32 s40, s28, {wstr}
s_mov_b32 m0, s40
v_mov_b32 v44, 0x3c00
s_mov_b32 s49, {q2}
ds_write_addtid_b32 v44 offset:{c0row}
s_mov_b32 s54, {q3}
s_mul_i32 s43, s29, {wstr}
s_add_u32 s42, s43, {yb}
s_mul_i32 s41, s29, {kch}
s_add_u32 s3, s41, {m0k}
s_mul_i32 s34, s29, {ustr}
v_mov_b32 v46, {log2e}
v_mov_b32 v45, {ihi}
v_mov_b32 v47, {ilo}
s_lshl_b32 s33, s29, 4
'''.format(q2=1024 * 896, q3=1536 * 896, wstr=WSTR, yb=YB, kch=KCH, m0k=M0K, c0row=boff(0), ustr=USTR, log2e=f32(LOG2E), ihi=f32(I_HI), ilo=f32(I_LO)))
TAB = []
for l in range(64):
    i16 = l & 15; kgp = 128 * ((l >> 4) & 1) + 64 * (l >> 5)
    TAB.append([AOFF[AROWS[0][i16]] + kgp, AOFF[AROWS[1][i16]] + kgp, boff(i16) + kgp, MOFF + kgp])
for l in range(64):
    h = l >> 5; row = l & 31; g1 = (l >> 4) & 1
    TAB.append([KBASE + PH[row & 3] + 16 * ((row >> 2) + h), KBASE + PH[2] * h + 4 * row,
                UBASE + 96 - 64 * h - 8 * ((l >> 2) & 3) + 32 * g1 + 8 * (l & 3), 0xffffffff if l & 1 else 0])
b.wait(lgkm=0)
stamp(b)
b('''
s_lshr_b64 s[36:37], s[36:37], s33
s_lshl_b32 s36, s36, 16
v_mul_f32 v18, s36, v46
v_exp_f32 v18, v18
s_nop 0
v_cvt_pk_bf16_f32 v18, 0, v18
v_mul_f32 v14, {nlog2e}, v18
v_mul_f32 v15, v45, v18
v_fma_f32 v16, v18, v45, -v15
v_fmac_f32 v16, v18, v47
'''.format(nlog2e=f32(-LOG2E)))
b.raw('    s_waitcnt vmcnt(4)')
b('s_cmp_eq_u32 s30, 0\ns_cbranch_scc1 L_w7')
b.raw('    s_waitcnt vmcnt(%d)' % (2 if OT else 1))
b('L_w7:')
b.vm = []
stamp(b)
if PRIO: b('s_setprio 3')
scale = '''
v_max3_f32 v176, |v56|, |v57|, |v214|
v_max_f32 v176, v176, |v215|
v_max_u32_dpp v176, v176, v176 row_shr:1 row_mask:0xf bank_mask:0xf
v_max_u32_dpp v176, v176, v176 row_shr:2 row_mask:0xf bank_mask:0xf
v_max_u32_dpp v176, v176, v176 row_shr:4 row_mask:0xf bank_mask:0xf
v_max_u32_dpp v176, v176, v176 row_shr:8 row_mask:0xf bank_mask:0xf
v_max_u32_dpp v176, v176, v176 row_bcast:15 row_mask:0xa bank_mask:0xf
v_max_u32_dpp v176, v176, v176 row_bcast:31 row_mask:0xc bank_mask:0xf
v_readlane_b32 s33, v176, 63
s_lshr_b32 s33, s33, 23
s_sub_u32 s33, 267, s33
s_min_u32 s33, s33, 253
s_lshl_b32 s44, s33, 23
s_sub_u32 s33, 255, s33
s_lshl_b32 s45, s33, 23
v_mul_f32 v18, s45, v18
v_add_u32 v20, s40, v20
v_add_u32 v21, s40, v21
v_add_u32 v22, s40, v22
v_add_u32 v23, s40, v23
'''.strip().split('\n')
assert R0.G0 == 56 and R1.G0 == 214
gA0 = gen_A(0); nnear = 2 + 7 * 3
ph1 = schedule(scale + gen_head(0) + gen_B(0) + gA0[:nnear])
ph2 = merge(schedule(gA0[nnear:]), rd_B(), schedule(gen_head(1)))
ph3 = rd_A() + merge(schedule(gen_B(1)), fin_stream(0))
ph4 = merge(schedule(gen_A(1)), rd_B())
if opt('rdfirst', 1):
    ph2 = rd_B() + merge(schedule(gA0[nnear:]), schedule(gen_head(1)))
    ph4 = rd_B() + schedule(gen_A(1))
allk = ph1 + ph2 + ['MID'] + ph3 + ph4
if opt('cl', 2) > 1: allk = cluster(allk, opt('cl', 2))
S2 = opt('s2', 0)
def pace(V, L, k0=0):
    return merge(V, L) if L else V
if S2 == 2:
    def parts_A(rnd):
        r = (R0, R1)[rnd]; hA = (hA0, hA1)[rnd]
        g = [r.G0, r.G1]
        gch = cvt16(hA[0], r.G0)
        for m in range(1, 9): gch += cmul32(g[m & 1], g[(m - 1) & 1], r.ZZ, conj=True) + cvt16(hA[256 * m], g[m & 1])
        pr = lambda lst: [x for d, a_, b_ in lst for x in cmul16(hA[d], hA[a_], b_, conj=True) + wrA(d, hA)]
        near = wrA(0, hA) + pr(((1, 0, r.hz), (2, 0, r.hz2), (4, 0, r.hz4), (3, 1, r.hz2), (5, 1, r.hz4), (6, 2, r.hz4), (7, 3, r.hz4)))
        o1 = wrA(256, hA) + pr(((258, 256, r.hz2), (260, 256, r.hz4), (262, 258, r.hz4)))
        far = [x for m in range(2, 9) for x in wrA(256 * m, hA)]
        farp = pr(((516, 512, r.hz4), (772, 768, r.hz4)))
        return gch, near, o1, far, farp
    g0, n0, o0, f0, fp0 = parts_A(0); g1, n1, o1_, f1, fp1 = parts_A(1)
    rA0 = rd_A()[0::2]; rA1 = rd_A()[1::2]
    mm = lambda rnd, a, bs: [x for x in kgen_mfmas(rnd, bs)[a::2]]
    gb1 = gen_B1()
    PA = schedule2(scale + gen_head(0) + gen_head(1) + g0 + g1 + gen_B(0) + n0 + o0 + f0 + fp0, pace=opt('pace', 3), lowq=opt('lowq', 1))
    cv1 = gen_B(1)
    PB = rd_B() + merge(schedule(cv1), rd_A(), gb1)
    PC = merge(kgen_mfmas(0, 0) + kgen_mfmas(0, 1), schedule(f1 + fp1 + o1_))
    nn = schedule(n1)
    PD = rd_B() + rA1 + nn
    PE = rA0 + gb1[:8] + merge(gb1[8:], mm(1, 1, 0) + mm(1, 0, 0)) + merge(mm(1, 1, 1), mm(1, 0, 1))
    full = PA + PB + ['MID'] + PC + PD + PE
    NT = opt('ntail', 32)
    allk = full[:-NT]; tailk = full[-NT:]
    sys.stderr.write(''.join('|' if x == 'MID' else ('M' if 'mfma' in x else ('P' if x.startswith('v_pk_') and '_f32' in x else {'v': 'v', 'd': 'L', 's': 's'}[x[0]])) for x in full) + '\n')
if '--loopk' in args:
    b.raw('    s_waitcnt vmcnt(0)')
    b('s_setprio 0\ns_barrier')
    stamp(b, True)
    b('s_mov_b32 s96, 10')
    if '--solo' in args: b('s_cmp_eq_u32 s30, 0\ns_cbranch_scc0 L_loopx')
    b.raw('L_loopk:')
    blk = [x for x in allk if x != 'MID'] + (tailk if S2 else rd_A() + fin_stream(1))
    if '--nomfma' in args: blk = [x for x in blk if 'mfma' not in x]
    if '--nowr' in args: blk = [x for x in blk if 'ds_write' not in x]
    if '--nord' in args: blk = [x for x in blk if 'ds_read' not in x]
    if '--novalu' in args: blk = [x for x in blk if not x.startswith('v_') or 'mfma' in x]
    if '--nopk32' in args: blk = [x for x in blk if not ('v_pk_' in x and 'f32' in x)]
    for t in blk: b(t)
    b.wait(lgkm=0)
    b('s_nop 7\ns_nop 7\ns_sub_u32 s96, s96, 1\ns_cmp_lg_u32 s96, 0\ns_cbranch_scc1 L_loopk\nL_loopx:')
    stamp(b, True)
    b('s_barrier')
    stamp(b, True)
PP = [int(len(allk) * float(x)) for x in opt('pp', '0.25,0.5,0.75').split(',')]
UP = [int(len(allk) * float(x)) for x in opt('up', '0.17,0.34,0.51,0.68').split(',')]
for i, t in enumerate(allk):
    for k, pt in enumerate(UP):
        if i == pt:
            b('s_cmp_eq_u32 s30, 0\ns_cbranch_scc0 L_nu%d' % k)
            b.raw('    ' + ul[4 + k])
            b('L_nu%d:' % k)
    for k, pt in enumerate(PP):
        if i == pt and PRIO: b('s_setprio %d' % (2 - k))
    if t == 'MID': stamp(b)
    else: b(t)
stamp(b)
if S2:
    m1 = tailk
    assert not any('addtid' in x for x in m1)
else:
    for t in rd_A(): b(t)
    m1 = fin_stream(1)
    NSH = opt('nsh', 16)
    for t in m1[:NSH]: b(t)
    m1 = m1[NSH:]
b('s_cmp_eq_u32 s30, 0')
b('s_cbranch_scc1 L_F')

DPHYS = {}
for (a_, r_), (dx, dy) in DMAP.items(): DPHYS[dx] = TACC(a_, 0) + r_; DPHYS[dy] = TACC(a_, 1) + r_
D = lambda i: DPHYS[i]
NX = 13
PARTNER = {}
for (dx, dy) in DMAP.values(): PARTNER[dx] = dy; PARTNER[dy] = dx
BFM = {}
BF = lambda m: BFM[m]
def set_bf(first):
    BFM.clear()
    for i, m in enumerate(first): BFM[m] = 224 + 4 * i
    for i, m in enumerate([m for m in range(32) if m not in first]): BFM[m] = 112 + 4 * i
def rdB_lines(m): return ['ds_read_b64_tr_b16 %s, v%d offset:%d' % (P(BF(m)), vCB, 128 * m + 32), 'ds_read_b64_tr_b16 %s, v%d offset:%d' % (P(BF(m) + 2), vCB, 128 * m)]

def kfin_parts():
    dp = 'bank_mask:0xf'
    cv = lambda d, x, y: 'v_cvt_pk_bf16_f32 v%d, v%d, v%d' % (d, x, y)
    fm = lambda i: 'v_fma_f32 v%d, v%d, v%d, v%d' % (D(i), D(i), vMULT, 192 + i)
    wr = lambda r, ph, off: 'ds_write_addtid_b32 v%d offset:%d' % (r, KBASE - M0K + KPADB + PH[ph] + off)
    nx = lambda s_, cur, nxt: ['v_mov_b32_dpp v%d, v%d wave_rol:1 row_mask:0xf %s' % (s_, D(nxt), dp),
                               'v_mov_b32_dpp v%d, v%d wave_shl:1 row_mask:0xf %s' % (s_, D(cur), dp)]
    sw = lambda x: 'v_permlane16_swap_b32 v%d, v%d' % (D(x), D(PARTNER[x]))
    p0 = [fm(0), fm(1), fm(2), fm(3), cv(206, D(0), D(1)), cv(207, D(2), D(3)), fm(5), fm(7), 'v_permlane16_swap_b32 v206, v207',
          'ds_write_b32 v%d, v206 offset:%d' % (vKW0, KPADB), 'ds_write_b32 v%d, v207 offset:%d' % (vKW0, KPADB + PH[1])]
    p1 = [fm(4), fm(6), sw(5), fm(8), sw(4), 'v_mov_b32 v210, v%d' % D(7), fm(10), cv(208, D(4), D(5)),
          'v_mov_b32_dpp v210, v%d wave_rol:1 row_mask:0x8 %s' % (D(8), dp), fm(9),
          'ds_write_b32 v%d, v208 offset:%d' % (vKW0, KPADB + 128),
          'v_mov_b32_dpp v210, v%d wave_shl:1 row_mask:0xc %s' % (D(7), dp), fm(11),
          cv(209, D(6), 210), 'ds_write_b32 v%d, v209 offset:%d' % (vKW0, KPADB + 128 + PH[1])]
    n8 = nx(211, 8, 10)
    p2 = [sw(8), sw(9), fm(12), n8[0], cv(212, D(8), D(9)), n8[1], wr(212, 0, 256), wr(212, 1, 256), cv(213, D(8), 211), cv(214, D(9), 211), wr(213, 2, 256), wr(214, 3, 256)]
    parts = [(256, p0), (512, p1), (1024, p2)]
    for (r, cur, nxt, off, lim) in ((215, 10, 11, 512, 1536), (219, 11, 12, 768, 2048)):
        n = nx(r, cur, nxt)
        L = [n[0], 's_nop 0', n[1], 's_nop 0', cv(r + 2, D(cur), r), 'v_bfi_b32 v%d, v%d, v%d, v%d' % (r + 1, vODD, r, D(cur)),
             wr(r + 2, 1, off), cv(r + 3, D(cur), r + 1), wr(r + 2, 2, off), wr(r + 2, 3, off), wr(r + 3, 0, off)]
        parts.append((lim, [x for x in L if x != 's_nop 0']))
    return parts

def conv_mfma(b, T, nB0):
    tiles = TILES[T]
    seq = []
    for ti, c0 in enumerate(tiles):
        ms = list(range(NBLK(c0)))
        if ti == 0 and T == 1 and opt('desc0', 1): ms = ms[::-1]
        if ti == 1 and T == 0 and opt('desc0', 1): ms = ms[::-1]
        if ti == 2 and T == 0 and opt('desc2', 1): ms = [4, 3, 2, 1, 5, 6, 7, 8, 0]
        if ti == 3 and T == 0 and opt('desc3', 1): ms = list(range(15, -1, -1)) + ms[16:]
        if ti == 1 and T == 1 and opt('desc3', 1): ms = list(range(12, -1, -1)) + ms[13:]
        seq += [(ti, c0, m) for m in ms]
    last = {}
    for idx, (ti, c0, m) in enumerate(seq): last[ti] = idx
    AB = opt('ab', 4); NB = 2 * AB
    ABUF = [240, 244, 248, 252, 56, 60, 2, 6][:NB]
    acc = lambda ti: 64 + 16 * (ti % 3)
    dp = 'row_mask:0xf bank_mask:0xf'
    A2 = lambda par, g: 36 + 8 * par + g
    A1 = lambda par, g: 40 + 8 * par + g
    def combine(ti, prev, groups):
        a = acc(ti); par = ti & 1
        L = []
        lv = [(lambda g: a + 4 * g + 3, lambda g: a + 4 * g + 2, lambda g: A2(par, g)),
              (lambda g: A2(par, g), lambda g: a + 4 * g + 1, lambda g: A1(par, g)),
              (lambda g: A1(par, g), lambda g: a + 4 * g, lambda g: 52 + g)]
        for li, (src, add, dst) in enumerate(lv):
            firsts = []; seconds = []
            for g in groups:
                p = src(g - 1) if g > groups[0] else (prev[li] if prev else None)
                if p is not None:
                    firsts.append('v_add_f32_dpp v%d, v%d, v%d wave_ror:1 %s' % (dst(g), p, add(g), dp))
                    seconds.append('v_add_f32_dpp v%d, v%d, v%d wave_shr:1 %s' % (dst(g), src(g), add(g), dp))
                else:
                    seconds.append('v_add_f32_dpp v%d, v%d, v%d wave_shr:1 %s bound_ctrl:0' % (dst(g), src(g), add(g), dp))
            L += firsts + seconds
        L.append('M0Y')
        for g in groups: L.append('ds_write_addtid_b32 v%d offset:%d' % (52 + g, ti * 1024 + g * 256))
        return L + (['MARK'] + ['GAP'] * opt('bgap', 2) + ['BAR'] if len(groups) > 1 else []), (a + 15, A2(par, 3), A1(par, 3))
    fq = []
    prev = None
    for ti, c0 in enumerate(tiles):
        if c0 in (544, 1536): prev = None
        L, prev = combine(ti, prev, (3,) if c0 < 0 else (0, 1, 2, 3))
        fq += [(last[ti] + CDELAY, x) for x in L]
    kq = [(lim, x) for lim, L in kfin_parts() for x in L]
    order = []
    for _, _, m in seq:
        if m not in order: order.append(m)
    loaded = set(order[:nB0])
    bq = [(m, x) for m in order[nB0:] for x in rdB_lines(m)]
    st = {'bars': 0, 'm0': 'x'}
    S2BAR = 1
    def setm0(w):
        if st['m0'] != w:
            b('s_mov_b32 m0, %s' % ('s3' if w == 'k' else 's42')); st['m0'] = w
    def emit_k():
        x = kq.pop(0)[1]
        if 'addtid' in x: setm0('k')
        b(x)
    def emit_f(x):
        if x == 'GAP' or x == 'M0Y': return
        if x == 'MARK':
            b.lds[-1] = b.lds[-1] | {('x', 'ymark')}; return
        if x == 'BAR':
            n = b._need(b.lds, {('x', 'ymark')})
            if n is not None: b.wait(lgkm=n)
            b('s_barrier'); st['bars'] += 1; return
        if 'addtid' in x: setm0('y')
        b(x)
    def emit_b():
        m, x = bq.pop(0)
        if 176 <= BF(m) < 224:
            while kq: emit_k()
        b(x)
        if not bq or bq[0][0] != m: loaded.add(m)
    def issue_reads(i):
        ti, c0, m = seq[i]
        if m >= 16:
            while st['bars'] < S2BAR: emit_f(fq.pop(0)[1])
        while m not in loaded: emit_b()
        maxtap = c0 - 64 * m - 32 + 224 + 63
        lims = [0, 256, 512, 1024, 1536, 2048]
        while kq and lims[lims.index(kq[0][0]) - 1] <= maxtap: emit_k()
        off = KPADB + (c0 - 64 * m - 32) // 2
        assert off >= 0 and off % 16 == 0
        b('ds_read_b128 %s, v%d offset:%d' % (Q(ABUF[i % NB]), vCA, off))
    cost = {'c': 0, 'lds': False}
    orig = b._emit
    def hooked(ins):
        if ins.kind == 'mfma': cost['c'] = 0; cost['lds'] = False
        else:
            l = ins.kind in ('dsr', 'dsw')
            cost['c'] += 4 * max(ins.ws, 1) + (8 if l and not cost['lds'] else 0); cost['lds'] = l
        orig(ins)
    b._emit = hooked
    def price(x):
        if x in ('GAP', 'M0Y', 'MARK'): return 0
        if x == 'BAR': return 8
        l = x.startswith('ds_')
        return 4 + (8 if l and not cost['lds'] else 0)
    def prereq(lo, hi):
        for i in range(lo, min(hi, len(seq))):
            ti, c0, m = seq[i]
            if m >= 16:
                while st['bars'] < S2BAR: emit_f(fq.pop(0)[1])
            maxtap = c0 - 64 * m - 32 + 224 + 63
            lims = [0, 256, 512, 1024, 1536, 2048]
            while kq and lims[lims.index(kq[0][0]) - 1] <= maxtap: emit_k()
        for i in range(lo, min(hi, len(seq))):
            while seq[i][2] not in loaded: emit_b()
    def batch(lo, hi):
        prereq(lo, hi)
        for i in range(lo, min(hi, len(seq))): issue_reads(i)
    F0 = opt('first', 2)
    batch(0, F0)
    stamp(b, True)
    nxt = F0
    started = set()
    BUD = opt('bud', 20)
    for i, (ti, c0, m) in enumerate(seq):
        a = acc(ti)
        if i >= AB and i % AB == 0:
            j = min(i + AB, len(seq)) - 1
            regs = {('v', ABUF[j % NB])} | {('v', BF(seq[k][2]) + 2) for k in range(i, j + 1)}
            n = b._need(b.lds, regs)
            if n is not None: b.wait(lgkm=n)
        b('v_mfma_f32_32x32x16_bf16 %s, %s, %s, %s' % (X16(a), Q(ABUF[i % NB]), Q(BF(m)), X16(a) if ti in started else '0'))
        started.add(ti)
        if i == 0 and nxt < AB: batch(nxt, AB); nxt = AB
        elif (i % AB == 0 or (i == 1 and F0 < AB)) and nxt < len(seq) and nxt <= i + AB: batch(nxt, nxt + AB); nxt += AB
        bud = BUD - (4 if (i + 1) % AB == 0 else 0) + (opt('bud0', 4) if st['bars'] < 1 else 0)
        need = {seq[k][2] for k in range(nxt, min(nxt + AB, len(seq)))} - loaded
        okb = lambda: bq and (bq[0][0] < 16 or (st['bars'] >= S2BAR and not kq))
        budf = bud + (opt('budf0', 24) if st['bars'] < opt('nearly', 1) else opt('budf', 0))
        while need and okb() and cost['c'] + price(bq[0][1]) <= bud and not (st['bars'] < 1 and fq[0][0] <= i):
            emit_b(); need -= loaded
        while fq and fq[0][0] <= i and cost['c'] + price(fq[0][1]) <= budf:
            x = fq.pop(0)[1]; emit_f(x)
            if x == 'GAP': break
        while kq and cost['c'] + price(kq[0][1]) <= bud: emit_k()
        while okb() and cost['c'] + price(bq[0][1]) <= bud: emit_b()
    b._emit = orig
    stamp(b, True)
    while fq: emit_f(fq.pop(0)[1])
    return order

def conv_fin(b, T):
    tiles = TILES[T]
    def pre_rd(tis):
        for ti in tis:
            for c in range(4): b('ds_read_u16_d16_hi v%d, v%d offset:%d' % (64 + 4 * ti + c, vUS, 2 * (tiles[ti] + 192) + c * USTR))
    def pre_m(tis):
        for ti in tis:
            r = 64 + 4 * ti
            for c in range(4): b('v_mul_f32 v%d, s%d, v%d' % (r + c, 50 + c, r + c))
            for c in range(4): b('v_cvt_pk_bf16_f32 v%d, 0, v%d' % (r + c, r + c))
    def yrd(ti, r): return ['ds_read2st64_b32 v[%d:%d], v%d offset0:%d offset1:%d' % (r, r + 1, vYR, ti * 4, ti * 4 + 21),
                            'ds_read2st64_b32 v[%d:%d], v%d offset0:%d offset1:%d' % (r + 2, r + 3, vYR, ti * 4 + 42, ti * 4 + 63)]
    def out(ti, y):
        c0 = tiles[ti]; r = 64 + 4 * ti
        if c0 >= 0:
            b('s_mov_b32 s33, %d' % (c0 * 896)); vo, so_ = (vOUT2 if c0 in (544, 1536) else vOUT), 's33'
        else: vo, so_ = 42, '0'
        for c in range(4): b('v_cvt_pk_bf16_f32 v%d, 0, v%d' % (y + c, y + c))
        for c in range(4): b('v_add_f32 v%d, v%d, v%d' % (y + c, y + c, r + c))
        b('v_cvt_pk_bf16_f32 v%d, v%d, v%d\nv_cvt_pk_bf16_f32 v%d, v%d, v%d' % (r, y, y + 1, r + 1, y + 2, y + 3))
        b('buffer_store_dwordx2 v[%d:%d], v%d, s[24:27], %s offen' % (r, r + 1, vo, so_))
    low = [ti for ti, c0 in enumerate(tiles) if c0 + 256 <= 1024]
    high = [ti for ti in range(len(tiles)) if ti not in low]
    pre_rd(low)
    if T == 0: b('v_add_u32 v42, %s, v%d' % (hex((-192 * 896) & 0xffffffff), vOUT))
    pre_m(low)
    stamp(b)
    for t in stage_u(2, 56) + stage_u(3, 60): b(t)
    stamp(b, True)
    first = True
    for ti, c0 in enumerate(tiles):
        if c0 < 0: continue
        b.barrier()
        rds = yrd(ti, 44) + (yrd(0, 48) if (T == 0 and ti == 1) else [])
        for x in rds: b(x)
        if first: pre_rd(high)
        stamp(b)
        out(ti, 44)
        if T == 0 and ti == 1: out(0, 48)
        if first: pre_m(high)
        first = False
    stamp(b, True)

def tail(b):
    if SPINAT == 99:
        b.wait(vm=0); nstamp[0] = 99; stamp(b)
    if STAMPS:
        b.wait(vm=0)
        stamp(b, True)
        b.raw('    s_memrealtime s[96:97]\n    s_waitcnt lgkmcnt(0)')
        n = nstamp[0]
        b('s_lshl_b32 s33, s2, 3\ns_add_u32 s33, s33, s28\ns_lshl_b32 s33, s33, 7\nv_mov_b32 v3, s33')
        for i in range(n):
            b('s_sub_u32 s34, s%d, s56' % (60 + 2 * i))
            b('v_mov_b32 v2, s34')
            b('global_store_dword v3, v2, s[58:59] offset:%d' % (4 * i))
        b('v_mov_b32 v2, s98\nglobal_store_dword v3, v2, s[58:59] offset:120\nv_mov_b32 v2, s96\nglobal_store_dword v3, v2, s[58:59] offset:124')
    b('s_endpgm')

base_stamp = nstamp[0]
parts = [b]
p = b.fork()
p.raw('L_F:')
p.vm = [{('v', vU + 2 * i), ('v', vU + 2 * i + 1)} for i in range(8)]
if PRIO: p('s_setprio %d' % opt('pf1', 1))
p('''
s_lshl_b32 s33, s29, 8
s_add_u32 s55, s33, %d
s_mov_b32 s46, 0x05040100
s_mov_b32 s47, 0x07060302
s_mov_b32 m0, s55
''' % M0U)
for t in merge(stage_u(0, 36) + stage_u(1, 40), m1): p(t)
p('s_mov_b32 m0, s43')
for i in range(NX): p('v_mul_f32 v%d, v%d, v%d' % (D(i), vMULT, D(i)))
for i in range(NX): p('ds_write_addtid_b32 v%d offset:%d' % (D(i), B2 + i * 256))
p('s_mov_b32 m0, s55')
stamp(p)
p.barrier()
if PRIO: p('s_setprio %d' % opt('pfin', 0))
for r in range(64, 84): p('v_mov_b32 v%d, 0' % r)
p('''
s_mov_b32 s24, s18
s_mov_b32 s25, s19
s_mov_b32 s27, 0x00020000
s_lshl_b32 s50, s38, 16
s_and_b32 s51, s38, 0xffff0000
s_lshl_b32 s52, s39, 16
s_and_b32 s53, s39, 0xffff0000
s_lshl_b32 s33, s29, 6
v_add_u32 v45, s33, v1
v_lshlrev_b32 v46, 2, v45
v_add_u32 v29, {yb}, v46
v_lshlrev_b32 v46, 1, v45
v_add_u32 v30, {usb}, v46
s_movk_i32 s34, 896
v_mul_u32_u24 v46, s34, v45
v_add_u32 v31, s35, v46
v_subrev_u32 v46, 32, v45
v_and_b32 v46, 0x40000000, v46
v_add_u32 v32, v31, v46
s_cmp_eq_u32 s31, 0
'''.format(yb=YB, usb=UBASE + 64 - 384))
p('s_cbranch_scc0 L_F1')
parts.append(p)
st2 = nstamp[0]
for T in (0, 1):
    nstamp[0] = st2
    q = p.fork()
    if T == 1: q.raw('L_F1:')
    conv_fin(q, T); tail(q); parts.append(q)
    sys.stderr.write('F T=%d counts %s nops %d\n' % (T, q.count, q.nops))
nstamp[0] = base_stamp
p = b.fork()
if PRIO: p('s_setprio %d' % opt('pm', 3))
p('s_mov_b32 m0, s43')
p.raw('    s_waitcnt vmcnt(0)')
p('v_add_u32 v24, s41, v24\nv_add_u32 v25, s41, v25\nv_add_u32 v26, s34, v26')
BARAT = opt('barat', 24)
for t in m1[:BARAT]: p(t)
p('s_cmp_eq_u32 s31, 0')
p('s_cbranch_scc0 L_M1')
parts.append(p)
st2 = nstamp[0]
nB0 = opt('nb0', 4)
for T in (0, 1):
    nstamp[0] = st2
    q = p.fork()
    if T == 1: q.raw('L_M1:')
    first = [0, 4, 3, 2] if T == 0 else [12, 11, 10, 9]
    set_bf(first)
    q('s_barrier')
    rx = ['ds_read_addtid_b32 v%d offset:%d' % (192 + i, B2 + i * 256) for i in (0, 1, 2, 3, 5, 7, 4, 6, 8, 10, 9, 11, 12)]
    rb = [t for m in first[:nB0] for t in rdB_lines(m)]
    rest = m1[BARAT:]
    if opt('mixrx', 1): seqx = cluster(merge(rx + rb, rest), opt('clx', 3)) if rest else rx + rb
    else: seqx = rx + rb + rest
    for t in seqx: q(t)
    order = conv_mfma(q, T, nB0); assert order[:nB0] == first[:nB0]
    tail(q); parts.append(q)
    sys.stderr.write('M T=%d counts %s nops %d\n' % (T, q.count, q.nops))
sys.stderr.write('main counts %s nops %d\n' % (b.count, b.nops))

ref = open('standalone__ssm_conv_s4d__prompt.s.ref').read().split('\n')
hdr = [l for l in ref if l.startswith(';') and '@launch' not in l]
out = '\n'.join(hdr) + '\n; @launch grid=(256,1,1) block=(512,1,1) lds=%d\n' % LDS_TOTAL
out += '''.amdgcn_target "amdgcn-amd-amdhsa--gfx950"
.text
.globl %s
.p2align 8
.type %s,@function
''' % (NAME, NAME)
parts = [parts[0]] + parts[4:] + parts[1:4]
out += ''.join(p.text() for p in parts)
out += 'L_end:\n    s_endpgm\n.p2align 7\nL_tab:\n' + ''.join('    .long %s\n' % ', '.join(hex(v) for v in row) for row in TAB)
out += '''.section .rodata,"a"
.p2align 6
.amdhsa_kernel %s
  .amdhsa_next_free_vgpr 256
  .amdhsa_next_free_sgpr 102
  .amdhsa_accum_offset 256
  .amdhsa_group_segment_fixed_size 0
  .amdhsa_kernarg_size 80
  .amdhsa_user_sgpr_count 2
  .amdhsa_user_sgpr_kernarg_segment_ptr 1
  .amdhsa_system_sgpr_workgroup_id_x 1
  .amdhsa_float_denorm_mode_32 3
.end_amdhsa_kernel
''' % NAME
out = re.sub(r' ; @[rw]:\w+', '', out)
open(OUT, 'w').write(out)
```
